```python
import torch

def _softmax(x, axis=-1):
    return torch.softmax(x, dim=axis)

def _gelu(x):
    return torch.nn.functional.gelu(x, approximate='tanh')

def _silu(x):
    return torch.nn.functional.silu(x)

def _sigmoid(x):
    return torch.sigmoid(x)

def _layernorm(x, axis=-1, eps=1e-05):
    m = x.mean(dim=axis, keepdim=True)
    v = x.var(dim=axis, keepdim=True, unbiased=False)
    return (x - m) / torch.sqrt(v + eps)

def _scatter_add(tgt, idx, src, axis=0):
    return tgt.clone().index_add_(axis, idx, src)

def _segment_sum(src, seg, n):
    out = torch.zeros((n,) + src.shape[1:], dtype=src.dtype)
    return out.index_add_(0, seg, src)

def _pad(x, pw):
    flat = tuple((v for pair in reversed(pw) for v in pair))
    return torch.nn.functional.pad(x, flat)
kernel_name = 'gated_mix__softmax_full_mha__mixer_gmlp__prompt'

def setup_inputs():

    _w = lambda a: (lambda t: t.to(torch.bfloat16) if t.is_floating_point() else t)(torch.as_tensor(a))

    def _A_setup():
        B, S, D = (1, 2048, 576)
        return {'x': _w((lambda *s: torch.randn(*s, dtype=torch.bfloat16) * 0.05)(B, S, D)), 'wqkv': _w((lambda *s: torch.randn(*s, dtype=torch.bfloat16) * 1.6)(D, 3 * D)), 'wo': _w((lambda *s: torch.randn(*s, dtype=torch.bfloat16) * 0.1)(D, D))}
    _A_in = _A_setup()

    def _B_setup():
        B, S, D, F = (1, 2048, 576, 4608)
        Fh = F // 2
        return {'x': _w((lambda *s: torch.randn(*s, dtype=torch.bfloat16) * 0.05)(B, S, D)), 'w_in': _w((lambda *s: torch.randn(*s, dtype=torch.bfloat16) * 1.6)(D, 2 * Fh)), 'w_sp': _w(0.01 * (lambda *s: torch.randn(*s, dtype=torch.bfloat16) * 1.6)(S, S)), 'b_sp': _w(1.0 + 0.01 * (lambda *s: torch.randn(*s, dtype=torch.bfloat16) * 0.05)(S)), 'w_out': _w((lambda *s: torch.randn(*s, dtype=torch.bfloat16) * 0.05)(Fh, D))}
    _B_in = _B_setup()
    return {'A_x': _A_in['x'], 'A_wqkv': _A_in['wqkv'], 'A_wo': _A_in['wo'], 'B_x': _B_in['x'], 'B_w_in': _B_in['w_in'], 'B_w_sp': _B_in['w_sp'], 'B_b_sp': _B_in['b_sp'], 'B_w_out': _B_in['w_out'], 'gate_w': _w((lambda *s: torch.randn(*s, dtype=torch.bfloat16) * 0.05)(576) * 16.0)}

def reference(A_x, A_wqkv, A_wo, B_x, B_w_in, B_w_sp, B_b_sp, B_w_out, gate_w):

    def _A_ref(x, wqkv, wo):
        B, S, D = x.shape
        H = 32
        Dh = D // H
        qkv = (lambda x, *d: x.permute(*d))((x @ wqkv).reshape(B, S, 3, H, Dh), 2, 0, 3, 1, 4)
        q, k, v = (qkv[0], qkv[1], qkv[2])
        scale = Dh ** (-0.5)
        scores = torch.einsum('bhqd,bhkd->bhqk', q, k) * scale
        p = _softmax(scores, axis=-1)
        o = torch.einsum('bhqk,bhkd->bhqd', p, v)
        return (lambda x, *d: x.permute(*d))(o, 0, 2, 1, 3).reshape(B, S, D) @ wo

    def _B_ref(x, w_in, w_sp, b_sp, w_out):
        B, S, D = x.shape
        F = w_in.shape[-1]
        Fh = F // 2
        z = _gelu(torch.einsum('bsd,df->bsf', x, w_in))
        z1 = z[..., :Fh].clone()
        z2 = _layernorm(z[..., Fh:], axis=-1)
        g = torch.einsum('ts,bsf->btf', w_sp, z2) + b_sp[None, :, None]
        return torch.einsum('bsf,fd->bsd', z1 * g, w_out)
    x = A_x
    g = _sigmoid((x * gate_w).sum(-1, keepdims=True))
    a = _A_ref(x, A_wqkv, A_wo)
    b = _B_ref(x, B_w_in, B_w_sp, B_b_sp, B_w_out)
    return g * a + (1 - g) * b
```

```python
import re

REG_RE = re.compile(r'^(v|a|s)\[(\d+):(\d+)\]$|^(v|a|s)(\d+)$')

def parse_reg(tok):
    tok = tok.strip()
    neg = False
    if tok.startswith('-'):
        tok = tok[1:]
    m = re.match(r'^abs\((.*)\)$', tok)
    if m: tok = m.group(1)
    if tok.startswith('|') and tok.endswith('|'): tok = tok[1:-1]
    if tok in ('vcc',): return [('s', 'vcc_lo'), ('s', 'vcc_hi')]
    if tok in ('vcc_lo', 'vcc_hi'): return [('s', tok)]
    if tok == 'exec': return [('s', 'exec_lo'), ('s', 'exec_hi')]
    if tok in ('exec_lo', 'exec_hi'): return [('s', tok)]
    if tok == 'm0': return [('s', 'm0')]
    m = REG_RE.match(tok)
    if not m: return []
    if m.group(1):
        k, a, b = m.group(1), int(m.group(2)), int(m.group(3))
        return [(k, i) for i in range(a, b + 1)]
    return [(m.group(4), int(m.group(5)))]

TRANS = ('v_exp_f32', 'v_log_f32', 'v_rcp_f32', 'v_rsq_f32', 'v_sqrt_f32', 'v_sin_f32', 'v_cos_f32', 'v_rcp_iflag_f32',
         'v_exp_f16', 'v_rcp_f16', 'v_log_f16')

class Inst:
    __slots__ = ('text', 'op', 'ops', 'defs', 'uses', 'kind', 'passes', 'mfma_c', 'mfma_ab', 'label', 'target', 'nop', 'mods')
    def __init__(self, text):
        self.text = text
        t = text.split(';')[0].strip()
        self.label = None; self.target = None; self.nop = 0
        self.defs = []; self.uses = []; self.kind = 'other'; self.passes = 0; self.mfma_c = []; self.mfma_ab = []
        self.mods = ''
        if t == '' or t.startswith('.'):
            self.op = None; self.kind = 'dir'; return
        if t.endswith(':'):
            self.label = t[:-1]; self.op = None; self.kind = 'label'; return
        parts = t.split(None, 1)
        op = parts[0]; self.op = op
        rest = parts[1] if len(parts) > 1 else ''
        ops = []; cur = ''; depth = 0
        for ch in rest:
            if ch == '[': depth += 1
            if ch == ']': depth -= 1
            if ch == ',' and depth == 0:
                ops.append(cur.strip()); cur = ''
            else: cur += ch
        if cur.strip(): ops.append(cur.strip())
        if ops:
            last = ops[-1].split()
            ops[-1] = last[0]
            self.mods = ' '.join(last[1:])
        self.ops = ops
        base = op
        for suf in ('_e32', '_e64', '_dpp', '_sdwa'):
            if base.endswith(suf): base = base[:-len(suf)]
        R = [parse_reg(o) for o in ops]
        allmods = self.mods
        if op.startswith('v_mfma'):
            self.kind = 'mfma'
            self.defs = R[0]; self.mfma_ab = R[1] + R[2]; self.mfma_c = R[3] if len(R) > 3 else []
            self.uses = self.mfma_ab + self.mfma_c
            if '32x32x16' in op or '32x32x8' in op: self.passes = 8
            elif '16x16x32' in op or '16x16x16' in op: self.passes = 4
            else: raise ValueError('unknown mfma ' + op)
        elif op.startswith('v_'):
            self.kind = 'valu'
            if base in TRANS: self.kind = 'trans'
            if op.startswith('v_cmp'):
                self.defs = R[0]; self.uses = sum(R[1:], [])
                if op.startswith('v_cmpx'): self.defs = self.defs + [('s', 'exec_lo'), ('s', 'exec_hi')]
            elif base in ('v_readfirstlane_b32', 'v_readlane_b32'):
                self.defs = R[0]; self.uses = sum(R[1:], []); self.kind = 'readlane'
            elif base.startswith('v_permlane') and 'swap' in base:
                self.defs = R[0] + R[1]; self.uses = R[0] + R[1]; self.kind = 'permlane'
            elif base in ('v_fmac_f32', 'v_pk_fmac_f16', 'v_dot2c_f32_bf16', 'v_writelane_b32'):
                self.defs = R[0]; self.uses = sum(R, [])
            elif base in ('v_add_co_u32', 'v_sub_co_u32', 'v_addc_co_u32', 'v_subb_co_u32', 'v_subrev_co_u32'):
                self.defs = R[0] + R[1]; self.uses = sum(R[2:], [])
            else:
                self.defs = R[0]; self.uses = sum(R[1:], [])
                if base == 'v_cndmask_b32' and len(ops) == 3: self.uses += [('s', 'vcc_lo'), ('s', 'vcc_hi')]
            if op.endswith('_dpp') or 'row_' in allmods or 'quad_perm' in allmods: self.kind = 'dpp' if self.kind == 'valu' else self.kind
        elif op.startswith('ds_'):
            self.kind = 'ds'
            if op.startswith('ds_read') or op.startswith('ds_bpermute') or op.startswith('ds_permute') or op.startswith('ds_swizzle') or ('_rtn' in op):
                self.defs = R[0]; self.uses = sum(R[1:], [])
            else:
                self.uses = sum(R, [])
        elif op.startswith('buffer_') or op.startswith('global_'):
            self.kind = 'vmem'
            islds = ' lds' in (' ' + allmods) or '_lds_' in op
            if op in ('buffer_wbl2', 'buffer_inv'):
                pass
            elif 'load' in op and not islds:
                self.defs = R[0]; self.uses = sum(R[1:], [])
            elif 'load' in op and islds:
                self.uses = sum(R, []) + [('s', 'm0')]; self.kind = 'vmem_lds'
            elif 'atomic' in op:
                self.uses = sum(R, [])
                if 'sc0' in allmods: self.defs = R[0]
            else:
                self.uses = sum(R, [])
                if 'x4' in op or 'x3' in op: self.kind = 'vmem_widestore'
        elif op.startswith('s_'):
            self.kind = 'salu'
            if op == 's_nop':
                self.nop = int(ops[0], 0) + 1
            elif op.startswith('s_cbranch') or op == 's_branch':
                self.kind = 'branch'; self.target = ops[0]
            elif op in ('s_waitcnt', 's_barrier', 's_endpgm', 's_setprio', 's_sleep'):
                pass
            elif op.startswith('s_cmp'):
                self.uses = sum(R, [])
            elif op.startswith('s_load') or op.startswith('s_memtime') or op.startswith('s_memrealtime') or op.startswith('s_getreg'):
                self.defs = R[0]; self.uses = sum(R[1:], [])
            elif op in ('s_and_saveexec_b64', 's_or_saveexec_b64'):
                self.defs = R[0] + [('s', 'exec_lo'), ('s', 'exec_hi')]; self.uses = sum(R[1:], [])
            else:
                self.defs = R[0]; self.uses = sum(R[1:], [])
        else:
            raise ValueError('unknown op: ' + text)

VALU_KINDS = ('valu', 'trans', 'readlane', 'permlane', 'dpp')

def inter(a, b):
    return bool(set(a) & set(b))

def vregs(l): return [r for r in l if r[0] in ('v', 'a')]
def sregs(l): return [r for r in l if r[0] == 's']

def required(p, c):
    need = 0
    pv = p.kind in VALU_KINDS
    cv = c.kind in VALU_KINDS
    if pv:
        pd = vregs(p.defs); ps = sregs(p.defs)
        if c.kind == 'mfma' and inter(pd, c.uses): need = max(need, 2)
        if p.kind == 'trans' and cv and c.kind != 'trans' and inter(pd, c.uses): need = max(need, 1)
        if p.kind == 'trans' and c.kind == 'trans' and inter(pd, c.uses): need = max(need, 1)
        if c.kind == 'readlane' and inter(pd, c.uses): need = max(need, 1)
        if c.kind in ('permlane', 'dpp') and inter(pd, c.uses): need = max(need, 2)
        if ps:
            if c.kind in ('vmem', 'vmem_lds', 'vmem_widestore') and inter(ps, c.uses): need = max(need, 5)
            if cv and inter(ps, c.uses): need = max(need, 4 if c.kind == 'readlane' else 2)
            if c.kind in ('salu', 'branch') and inter(ps, c.uses): need = max(need, 2)
            if c.kind == 'branch' and c.op in ('s_cbranch_vccz', 's_cbranch_vccnz') and inter(ps, [('s', 'vcc_lo')]): need = max(need, 5)
    if p.op and p.op.startswith('v_dot') and not (c.op == p.op and inter(p.defs, c.uses) and not inter(p.defs, sum([parse_reg(o) for o in c.ops[1:3]], []))):
        if inter(p.defs, c.uses) or inter(p.defs, c.defs): need = max(need, 3)
    if p.kind == 'mfma':
        P = p.passes
        d = p.defs
        t_c = {2: 4, 4: 6, 8: 10, 16: 18}[P]; t_x = {2: 5, 4: 8, 8: 12, 16: 20}[P]; t_war = {2: 1, 4: 3, 8: 7, 16: 15}[P]
        if c.kind == 'mfma':
            if inter(d, c.mfma_ab): need = max(need, t_x)
            if inter(d, c.mfma_c):
                if not (c.mfma_c == d and c.passes == P): need = max(need, t_c)
            if inter(d, c.defs) and not inter(d, c.mfma_c): need = max(need, t_c)
        else:
            if inter(d, c.uses) or inter(d, c.defs): need = max(need, t_x)
            if cv and inter(p.mfma_c, c.defs): need = max(need, t_war)
            if c.kind in ('ds', 'vmem') and inter(p.mfma_c, c.defs): need = max(need, t_war)
    if p.kind == 'salu' and ('s', 'm0') in p.defs and c.kind == 'vmem_lds': need = max(need, 1)
    if p.kind == 'vmem_widestore':
        data = parse_reg(p.ops[0])
        if inter(data, c.defs): need = max(need, 2 if cv else 1)
    return need

MAXD = 20

class Asm:
    def __init__(self):
        self.items = []
        self.uid = 0
    def __call__(self, text):
        for line in text.split('\n'):
            s = line.strip()
            if s == '' : continue
            if s.startswith(';'):
                i = Inst(''); i.text = s; self.items.append(i); continue
            self.items.append(Inst(s))
    def newlabel(self, base):
        self.uid += 1
        return f"L_{base}_{self.uid}"
    def label(self, name):
        self(name + ':')
    def fix_hazards(self, verbose=False):
        items = self.items
        n = len(items)
        labels = {it.label: i for i, it in enumerate(items) if it.kind == 'label'}
        brs = {}
        for i, it in enumerate(items):
            if it.kind == 'branch' and it.target in labels: brs.setdefault(labels[it.target], []).append(i)
        pre = [0] * (n + 1)
        inserted = 0
        UNCOND = ('s_branch', 's_endpgm', 's_setpc_b64')
        for i in range(n):
            c = items[i]
            if c.op is None: continue
            if not (c.uses or c.defs): continue
            worst = 0
            stack = [(i - 1, 0, True)]
            seen = set()
            while stack:
                j, dist, viabranch = stack.pop()
                first = True
                while j >= 0 and dist < MAXD:
                    key = (j, dist)
                    if key in seen: break
                    seen.add(key)
                    p = items[j]
                    if p.kind == 'label':
                        for b in brs.get(j, []): stack.append((b, dist, 'br'))
                        j -= 1; first = True; viabranch = False; continue
                    if p.op is None: j -= 1; continue
                    if p.op in UNCOND and not (first and viabranch == 'br'):
                        break
                    first = False; viabranch = False
                    need = required(p, c)
                    if need > dist: worst = max(worst, need - dist)
                    dist += (p.nop if p.op == 's_nop' else 1) + pre[j]
                    j -= 1
            if worst > 0:
                pre[i] += worst; inserted += worst
                if verbose: print(f"hazard: inserted {worst} before: {c.text}")
        out = []
        for i in range(n):
            k = pre[i]
            while k > 0:
                m = min(k, 16); out.append(Inst(f's_nop {m - 1}')); k -= m
            out.append(items[i])
        self.items = out
        return inserted
    def text(self):
        out = []
        for it in self.items:
            if it.kind == 'label': out.append(it.text)
            elif it.kind == 'dir': out.append(it.text)
            else: out.append('    ' + it.text)
        return '\n'.join(out) + '\n'
```

```python
from common import *
from k1 import Lg
EXP = os.environ.get('EXP','')
AT_SLOT = 19456
AT_NSLOT = 4
AT_LDS = AT_SLOT * AT_NSLOT
CHUNK = 8 * KV_TILE
STO = os.environ.get('STO', '')

def attn_body(a, sWG, endlabel, pfx="at", prio=None):
    sWS = 24
    sWave, sHead, sQB, sCh, sSlotD, sSrc = 36, 37, 38, 39, 40, 41
    a(f"""
    s_load_dwordx2 s[8:9], s[0:1], {KA['ws']}
    v_lshrrev_b32 v1, 6, v0
    v_and_b32 v2, 63, v0                 ; lane
    s_and_b32 s42, s{sWG}, 7             ; xcd
    s_lshr_b32 s43, s{sWG}, 3            ; i
    v_readfirstlane_b32 s{sWave}, v1
    s_and_b32 s44, s43, 3
    s_lshl_b32 s42, s42, 2
    s_add_u32 s{sHead}, s42, s44
    s_lshr_b32 s{sQB}, s43, 2            ; q block 0..7
    s_waitcnt lgkmcnt(0)
    """)
    if prio is not None: a(f"s_setprio {prio}")
    stamp(a, 0)
    srd(a, sWS, 8, 9, WS_USED)
    vL16 = 3
    a(f"""
    v_lshlrev_b32 v{vL16}, 4, v2
    s_mul_i32 s{sSrc}, s{sHead}, {KV_HEAD}
    s_lshl_b32 s44, s{sWave}, 10
    s_add_u32 s{sSrc}, s{sSrc}, s44
    s_add_u32 s{sSrc}, s{sSrc}, {OFF_KV}
    s_mov_b32 s{sSlotD}, s44
    """)
    def issue_chunk():
        for j in range(4):
            a(f"s_add_u32 m0, s{sSlotD}, {j*4096}")
            a(f"s_add_u32 s45, s{sSrc}, {j*4096}")
            a(f"buffer_load_dwordx4 v{vL16}, s[{sWS}:{sWS+3}], s45 offen lds")
        l = a.newlabel(pfx + "_sk")
        a(f"s_cmp_eq_u32 s{sWave}, 3")
        a(f"s_cbranch_scc1 {l}")
        a(f"s_add_u32 m0, s{sSlotD}, {4*4096}")
        a(f"s_add_u32 s45, s{sSrc}, {4*4096}")
        a(f"buffer_load_dwordx4 v{vL16}, s[{sWS}:{sWS+3}], s45 offen lds")
        a.label(l)
        a(f"""
        s_add_u32 s{sSrc}, s{sSrc}, {CHUNK}
        s_add_u32 s{sSlotD}, s{sSlotD}, {AT_SLOT}
        s_lshl_b32 s45, s{sWave}, 10
        s_add_u32 s45, s45, {AT_NSLOT*AT_SLOT}
        s_cmp_ge_u32 s{sSlotD}, s45
        s_cselect_b32 s46, {AT_NSLOT*AT_SLOT}, 0
        s_sub_u32 s{sSlotD}, s{sSlotD}, s46
        """)
    Q = 8
    KB = 24
    VB = 40
    P = 56
    S = 64
    O = 96
    C = 128
    vK1, vK2, vV, vG = 4, 5, 6, 7
    a(f"""
    s_mul_i32 s44, s{sHead}, {QF_HEAD}
    s_lshl_b32 s45, s{sQB}, 3
    s_lshl_b32 s46, s{sWave}, 1
    s_add_u32 s45, s45, s46
    s_mul_i32 s46, s45, {QF_TILE}
    s_add_u32 s44, s44, s46
    s_add_u32 s44, s44, {OFF_QF}
    v_and_b32 v60, 31, v2
    v_lshrrev_b32 v61, 5, v2              ; h
    v_lshlrev_b32 v62, 9, v61
    v_lshl_add_u32 v{vK1}, v60, 4, v62    ; h*512 + pos*16
    v_lshlrev_b32 v{vK2}, 2, v60
    v_add_u32 v{vK2}, 1024, v{vK2}        ; 1024 + pos*4
    v_mov_b32 v63, {OOB}
    v_cmp_eq_u32 vcc, 0, v61
    v_cndmask_b32 v63, v63, v{vK2}, vcc
    """)
    for qt in range(2):
        a(f"buffer_load_dwordx4 v[{Q+8*qt}:{Q+8*qt+3}], v{vK1}, s[{sWS}:{sWS+3}], s44 offen offset:{qt*QF_TILE}")
        a(f"buffer_load_dword v{Q+8*qt+4}, v63, s[{sWS}:{sWS+3}], s44 offen offset:{qt*QF_TILE}")
    a(f"""
    s_lshl_b32 s46, s45, 7                ; tile32*32*4
    s_add_u32 s46, s46, {OFF_GATE}
    v_lshlrev_b32 v62, 2, v60
    buffer_load_dword v160, v62, s[{sWS}:{sWS+3}], s46 offen
    buffer_load_dword v161, v62, s[{sWS}:{sWS+3}], s46 offen offset:128
    """)
    for i in range(3): issue_chunk()
    a(f"""
    v_mov_b32 v62, 4
    v_cmp_gt_u32 vcc, 19, v60
    v_cndmask_b32 v62, v62, v60, vcc
    v_subrev_u32 v63, 20, v60
    v_cmp_gt_u32 vcc, 8, v63
    v_cndmask_b32 v62, v62, 0, vcc
    v_mul_u32_u24 v63, 304, v61
    v_lshl_add_u32 v62, v62, 4, v63
    v_add_u32 v{vV}, 1152, v62
    """)
    for qt in range(2):
        for j in range(1, 4): a(f"v_mov_b32 v{Q+8*qt+4+j}, 0")
    for b in range(2):
        for j in range(1, 4): a(f"v_mov_b32 v{KB+8*b+4+j}, 0")
    for i in range(32): a(f"v_mov_b32 v{O+i}, 0")
    a(f"v_mov_b32 v162, v{vK1}\nv_mov_b32 v163, v{vK2}\nv_mov_b32 v164, v{vV}")
    lg = Lg(a)
    def rdK(kt, b):
        lg.issue(('k', b), f"ds_read_b128 v[{KB+8*b}:{KB+8*b+3}], v{vK1} offset:{kt*KV_TILE}")
        lg.issue(('k', b), f"ds_read_b32 v{KB+8*b+4}, v{vK2} offset:{kt*KV_TILE}")
    def rdV(kt, b, m):
        lg.issue(('v', b, m), f"ds_read_b128 v[{VB+8*b+4*m}:{VB+8*b+4*m+3}], v{vV} offset:{kt*KV_TILE + m*608}")
    a("s_waitcnt vmcnt(8)")
    a("s_barrier")
    stamp(a, 1)
    rdK(0, 0); rdV(0, 0, 0); rdV(0, 0, 1)
    lg.waitall()
    for qt in range(2):
        mf32(a, S+16*qt, KB, Q+8*qt, "0")
        mf32(a, S+16*qt, KB+4, Q+8*qt+4)
    def rowmax(qt, dst):
        s0 = S + 16*qt
        a(f"v_max3_f32 v{dst}, v{s0}, v{s0+1}, v{s0+2}")
        for i in range(3, 15, 2): a(f"v_max3_f32 v{dst}, v{dst}, v{s0+i}, v{s0+i+1}")
        a(f"v_max_f32 v{dst}, v{dst}, v{s0+15}")
    def cross_half_max_to_C(qt, src):
        a(f"""
        v_mov_b32 v62, v{src}
        v_mov_b32 v63, v{src}
        v_permlane32_swap_b32 v62, v63
        v_max_f32 v62, v62, v63
        v_sub_f32 v62, 0, v62
        """)
        for i in range(16): a(f"v_mov_b32 v{C+16*qt+i}, v62")
    for qt in range(2):
        rowmax(qt, 60)
        cross_half_max_to_C(qt, 60)
    mf32(a, S, KB, Q, C)
    mf32(a, S, KB+4, Q+4)
    for i in range(4): a(f"v_mov_b32 v{P+4+i}, 0\nv_mov_b32 v{VB+12+i}, 0")
    a(f"s_mov_b32 s{sCh}, 0")
    a(f"s_mov_b32 s47, 0")
    L = f"L_{pfx}_loop"
    a.label(L)
    for u in range(16):
        kt = u >> 1; qt = u & 1
        Sc = S + 16*(u % 2); Sn = S + 16*((u+1) % 2)
        un = u + 1; ktn = un >> 1; qtn = un & 1
        bK = ktn % 2; bV = kt % 2
        pk = (u - 1) >> 1
        pq = (u - 1) & 1
        bVp = pk % 2
        def e(i): a(f"v_exp_f32 v{Sc+i}, v{Sc+i}")
        def c(i): a(f"v_cvt_pk_bf16_f32 v{P+i}, v{Sc+2*i}, v{Sc+2*i+1}")
        if u == 14:
            l0 = a.newlabel(pfx+"_w0"); l1 = a.newlabel(pfx+"_w1"); l2 = a.newlabel(pfx+"_nl")
            lg.waitall()
            a(f"""
            s_cmp_eq_u32 s{sCh}, 7
            s_cbranch_scc1 {l2}
            s_cmp_eq_u32 s{sCh}, 6
            s_cbranch_scc1 {l0}
            s_waitcnt vmcnt(4)
            s_branch {l1}
            {l0}:
            s_waitcnt vmcnt(0)
            {l1}:
            s_barrier
            """)
            l3 = a.newlabel(pfx+"_ni")
            a(f"s_cmp_ge_u32 s{sCh}, 5\ns_cbranch_scc1 {l3}")
            issue_chunk()
            a.label(l3)
            a(f"""
            s_add_u32 s47, s47, {AT_SLOT}
            s_cmp_ge_u32 s47, {AT_NSLOT*AT_SLOT}
            s_mov_b32 s45, {AT_SLOT}
            s_cselect_b32 s45, {(-(AT_NSLOT-1)*AT_SLOT) & 0xffffffff}, s45
            s_cselect_b32 s47, 0, s47
            """)
            a.label(l2)
        reads = []
        if u % 2 == 0:
            k1 = kt + 1
            if k1 < 8:
                reads.append(lambda k1=k1: rdK(k1, k1 % 2))
        M1pos = True
        if ktn < 8:
            if u % 2 == 1: lg.wait(('k', bK))
            mf32(a, Sn, KB+8*bK, Q+8*qtn, C+16*qtn)
        else:
            lg.wait(('k', 0))
            mf32(a, Sn, KB, Q+8*qtn, C+16*qtn)
        if u == 14:
            lz = a.newlabel(pfx+"_adv")
            a(f"s_cmp_eq_u32 s{sCh}, 7\ns_cselect_b32 s45, 0, s45")
            a(f"v_add_u32 v{vK1}, s45, v{vK1}\nv_add_u32 v{vK2}, s45, v{vK2}")
            rdK(0, 0)
        elif reads: reads[0]()
        e(0); e(1); e(2)
        if u > 0:
            lg.wait(('v', bVp, 1))
            mf32(a, O+16*pq, VB+8*bVp+4, P+4)
        else:
            mf32(a, O+16, VB+8+4, P+4)
        if u % 2 == 0 and kt + 1 < 8:
            rdV(kt+1, (kt+1) % 2, 0); rdV(kt+1, (kt+1) % 2, 1)
        if u == 14:
            a(f"v_add_u32 v{vV}, s45, v{vV}")
            rdV(0, 0, 0); rdV(0, 0, 1)
        e(3); e(4); e(5)
        bKn = bK if ktn < 8 else 0
        mf32(a, Sn, KB+8*bKn+4, Q+8*qtn+4)
        e(6); e(7); c(0); c(1); c(2); c(3); e(8); e(9)
        lg.wait(('v', bV, 0))
        mf32(a, O+16*qt, VB+8*bV, P)
        for i in range(10, 16): e(i)
        for i in range(4, 8): c(i)
    lg.waitall(); a("s_waitcnt lgkmcnt(0)")
    a(f"""
    s_add_u32 s{sCh}, s{sCh}, 1
    s_cmp_lt_u32 s{sCh}, 8
    s_cbranch_scc1 {L}
    """)
    mf32(a, O+16, VB+8+4, P+4)
    stamp(a, 2)
    lg.q = []
    a.label(f"L_{pfx}_epi")
    sFB = 48
    def normalise_and_check(check):
        for qt in range(2):
            o = O + 16*qt
            a(f"""
            v_mov_b32 v62, v{o+10}
            v_mov_b32 v63, v{o+10}
            v_permlane32_swap_b32 v62, v63
            v_mov_b32 v{165+qt}, v62
            """)
        if check:
            a(f"s_mov_b32 s45, 0x53800000")
            a(f"v_cmp_nle_f32 vcc, v165, s45") if False else None
            a(f"v_mov_b32 v60, s45")
            a(f"v_cmp_nle_f32 s[50:51], v165, v60")
            a(f"v_cmp_nle_f32 s[52:53], v166, v60")
            a(f"s_or_b64 s[50:51], s[50:51], s[52:53]")
            a(f"v_mov_b32 v60, 0")
            for qt in range(2):
                for i in range(10):
                    if True:
                        a(f"v_max_f32 v60, v60, abs(v{O+16*qt+i})") if False else None
            a(f"v_mov_b32 v61, 0")
            for qt in range(2):
                for i in range(8):
                    a(f"v_max_f32 v61, v61, abs(v{O+16*qt+i})")
            a(f"s_mov_b32 s45, 0x7f000000")
            a(f"v_mov_b32 v60, s45")
            a(f"v_cmp_nle_f32 s[52:53], v61, v60")
            a(f"s_or_b64 s[50:51], s[50:51], s[52:53]")
            if 'forcefb' in EXP: a("s_mov_b64 s[50:51], -1")
            a(f"s_cmp_lg_u64 s[50:51], 0")
            a(f"s_cbranch_scc1 L_{pfx}_fallback")
    normalise_and_check(True)
    a.label(f"L_{pfx}_store")
    a(f"""
    v_and_b32 v60, 31, v2                 ; q
    v_lshrrev_b32 v61, 5, v2              ; hh
    s_lshl_b32 s44, s{sQB}, 4
    s_lshl_b32 s45, s{sWave}, 2
    s_add_u32 s44, s44, s45
    s_mul_i32 s44, s44, {AF_T}
    s_add_u32 s44, s44, {OFF_AF}
    v_lshrrev_b32 v62, 4, v60             ; q>>4
    v_mul_u32_u24 v62, {AF_T}, v62
    v_and_b32 v63, 15, v60
    v_lshl_add_u32 v62, v63, 4, v62       ; + t16*16
    s_and_b32 s45, s{sHead}, 1
    s_lshl_b32 s45, s45, 9                ; (head&1)*2*256
    s_lshr_b32 s46, s{sHead}, 1
    s_lshl_b32 s46, s46, 10
    s_add_u32 s45, s45, s46
    v_lshl_add_u32 v56, v61, 8, v62       ; + hh*256
    v_add_u32 v56, s45, v56
    s_lshr_b32 s45, s{sHead}, 4
    s_add_u32 s45, s45, 16
    s_lshl_b32 s45, s45, 10
    s_bfe_u32 s46, s{sHead}, 0x20002
    s_lshl_b32 s46, s46, 8
    s_add_u32 s45, s45, s46
    s_and_b32 s46, s{sHead}, 3
    s_lshl_b32 s46, s46, 2
    s_add_u32 s45, s45, s46
    v_add_u32 v57, s45, v62
    v_mov_b32 v58, {OOB}
    v_cmp_eq_u32 vcc, 0, v61
    v_cndmask_b32 v57, v58, v57, vcc
    """)
    for qt in range(2):
        o = O + 16*qt
        a(f"""
        v_rcp_f32 v60, v{165+qt}
        v_mul_f32 v60, v60, v{160+qt}
        """)
        for i in range(10): a(f"v_mul_f32 v{o+i}, v60, v{o+i}")
        d = 40 + 8*qt
        a(f"""
        v_cvt_pk_bf16_f32 v{d}, v{o}, v{o+1}
        v_cvt_pk_bf16_f32 v{d+1}, v{o+2}, v{o+3}
        v_cvt_pk_bf16_f32 v{d+2}, v{o+4}, v{o+5}
        v_cvt_pk_bf16_f32 v{d+3}, v{o+6}, v{o+7}
        v_cvt_pk_bf16_f32 v{d+4}, v{o+8}, v{o+9}
        s_add_u32 s45, s44, {qt*2*AF_T}
        buffer_store_dwordx4 v[{d}:{d+3}], v56, s[{sWS}:{sWS+3}], s45 offen {STO}
        buffer_store_dword v{d+4}, v57, s[{sWS}:{sWS+3}], s45 offen {STO}
        """)
    a(f"s_branch {endlabel}")
    a.label(f"L_{pfx}_fallback")
    a(f"""
    s_mul_i32 s49, s{sHead}, {KV_HEAD}
    s_add_u32 s49, s49, {OFF_KV}
    v_mov_b32 v167, 0xff800000
    v_mov_b32 v168, 0xff800000
    s_mov_b32 s50, 0
    L_{pfx}_fb1:
    s_add_u32 s51, s49, s50
    buffer_load_dwordx4 v[{KB}:{KB+3}], v162, s[{sWS}:{sWS+3}], s51 offen
    buffer_load_dword v{KB+4}, v163, s[{sWS}:{sWS+3}], s51 offen
    s_waitcnt vmcnt(0)
    """)
    for qt in range(2):
        mf32(a, S+16*qt, KB, Q+8*qt, "0")
        mf32(a, S+16*qt, KB+4, Q+8*qt+4)
    for qt in range(2):
        rowmax(qt, 60)
        a(f"v_max_f32 v{167+qt}, v{167+qt}, v60")
    a(f"""
    s_add_u32 s50, s50, {KV_TILE}
    s_cmp_lt_u32 s50, {KV_HEAD}
    s_cbranch_scc1 L_{pfx}_fb1
    """)
    for qt in range(2): cross_half_max_to_C(qt, 167+qt)
    for i in range(32): a(f"v_mov_b32 v{O+i}, 0")
    a(f"""
    s_mov_b32 s50, 0
    L_{pfx}_fb2:
    s_add_u32 s51, s49, s50
    buffer_load_dwordx4 v[{KB}:{KB+3}], v162, s[{sWS}:{sWS+3}], s51 offen
    buffer_load_dword v{KB+4}, v163, s[{sWS}:{sWS+3}], s51 offen
    buffer_load_dwordx4 v[{VB}:{VB+3}], v164, s[{sWS}:{sWS+3}], s51 offen
    buffer_load_dwordx4 v[{VB+4}:{VB+7}], v164, s[{sWS}:{sWS+3}], s51 offen offset:608
    s_waitcnt vmcnt(0)
    """)
    for qt in range(2):
        mf32(a, S+16*qt, KB, Q+8*qt, C+16*qt)
        mf32(a, S+16*qt, KB+4, Q+8*qt+4)
    for qt in range(2):
        s0 = S + 16*qt
        for i in range(16): a(f"v_exp_f32 v{s0+i}, v{s0+i}")
        for i in range(8): a(f"v_cvt_pk_bf16_f32 v{P+i}, v{s0+2*i}, v{s0+2*i+1}")
        mf32(a, O+16*qt, VB, P)
        mf32(a, O+16*qt, VB+4, P+4)
    a(f"""
    s_add_u32 s50, s50, {KV_TILE}
    s_cmp_lt_u32 s50, {KV_HEAD}
    s_cbranch_scc1 L_{pfx}_fb2
    """)
    normalise_and_check(False)
    a(f"s_branch L_{pfx}_store")

def attn_kernel(a, name):
    kernel_begin(a, name)
    a("s_cmp_ge_u32 s2, 256\ns_cbranch_scc1 L_at_end")
    attn_body(a, 2, "L_at_fin")
    a.label("L_at_fin")
    if DIAG:
        a("s_waitcnt vmcnt(0)")
        stamp(a, 3)
        stamp_flush(a, 24, 36, 1, 4)
    a.label("L_at_end")
    a("s_endpgm")
    kernel_end(a, name)
```

```python
from common import *
from k1 import Lg
EXP = os.environ.get('EXP','')
STB = os.environ.get('STB', '')
STU = os.environ.get('STU', '')
GK1 = 2.0 * math.sqrt(2.0 / math.pi) * math.log2(math.e)
GK2 = GK1 * 0.044715
LN_RS = 4624
LN_LDS = 8 * LN_RS + 256
B_SLOT = 18432
B_LDS = 4 * B_SLOT

def gelu_pairs(a, regs, kreg, tmp):
    pass

def emit_gelu_pair(a, r, vK1, sK2, vOne, t):
    a(f"v_pk_mul_f32 v[{t}:{t+1}], v[{r}:{r+1}], v[{r}:{r+1}]")
    a(f"v_pk_fma_f32 v[{t}:{t+1}], v[{t}:{t+1}], s[{sK2}:{sK2+1}], v[{vK1}:{vK1+1}]")
    a(f"v_pk_mul_f32 v[{t}:{t+1}], v[{t}:{t+1}], v[{r}:{r+1}]")
    a(f"v_exp_f32 v{t}, v{t}")
    a(f"v_exp_f32 v{t+1}, v{t+1}")
    a(f"v_pk_add_f32 v[{t}:{t+1}], v[{t}:{t+1}], v[{vOne}:{vOne+1}]")
    a(f"v_rcp_f32 v{t}, v{t}")
    a(f"v_rcp_f32 v{t+1}, v{t+1}")
    a(f"v_pk_mul_f32 v[{r}:{r+1}], v[{r}:{r+1}], v[{t}:{t+1}]")

def gelu_many(a, pairs, vK1, sK2, vOne, temps):
    n = len(temps)
    for i in range(0, len(pairs), n):
        grp = pairs[i:i+n]
        for r, t in zip(grp, temps): a(f"v_pk_mul_f32 v[{t}:{t+1}], v[{r}:{r+1}], v[{r}:{r+1}]")
        for r, t in zip(grp, temps): a(f"v_pk_fma_f32 v[{t}:{t+1}], v[{t}:{t+1}], s[{sK2}:{sK2+1}], v[{vK1}:{vK1+1}]")
        for r, t in zip(grp, temps): a(f"v_pk_mul_f32 v[{t}:{t+1}], v[{t}:{t+1}], v[{r}:{r+1}]")
        for r, t in zip(grp, temps): a(f"v_exp_f32 v{t}, v{t}\nv_exp_f32 v{t+1}, v{t+1}")
        for r, t in zip(grp, temps): a(f"v_pk_add_f32 v[{t}:{t+1}], v[{t}:{t+1}], v[{vOne}:{vOne+1}]")
        for r, t in zip(grp, temps): a(f"v_rcp_f32 v{t}, v{t}\nv_rcp_f32 v{t+1}, v{t+1}")
        for r, t in zip(grp, temps): a(f"v_pk_mul_f32 v[{r}:{r+1}], v[{r}:{r+1}], v[{t}:{t+1}]")

def gelu_consts(a, vK1, sK2, vOne):
    a(f"""
    v_mov_b32 v{vK1}, {hex(f2u(-GK1))}
    v_mov_b32 v{vK1+1}, {hex(f2u(-GK1))}
    s_mov_b32 s{sK2}, {hex(f2u(-GK2))}
    s_mov_b32 s{sK2+1}, {hex(f2u(-GK2))}
    v_mov_b32 v{vOne}, 1.0
    v_mov_b32 v{vOne+1}, 1.0
    """)

def ln_body(a, sWG, sWS, sWave, pfx):
    sWSP = 28
    srd(a, sWSP, 12, 13, S_TOK * S_TOK * 2)
    Z = 64
    RAW = 16
    WR = 136
    a(f"""
    ; ---- z2 loads
    s_lshr_b32 s44, s{sWG}, 1              ; ttile16
    s_mul_i32 s44, s44, {Z2D_T}
    s_add_u32 s44, s44, {OFF_Z2D}
    s_mul_i32 s45, s{sWave}, {18*1024}
    s_add_u32 s44, s44, s45
    s_and_b32 s45, s{sWG}, 1
    s_lshl_b32 s45, s45, 7                 ; tokbase*16
    s_add_u32 s44, s44, s45
    v_and_b32 v3, 7, v2                    ; tok
    v_bfe_u32 v4, v2, 3, 2                 ; g
    v_lshrrev_b32 v5, 5, v2                ; kbo
    v_lshlrev_b32 v6, 4, v3
    v_lshl_add_u32 v6, v4, 8, v6
    v_lshl_add_u32 v6, v5, 10, v6
    """)
    for i in range(9):
        a(f"s_add_u32 s45, s44, {i*2048}")
        a(f"buffer_load_dwordx4 v[{RAW+4*i}:{RAW+4*i+3}], v6, s[{sWS}:{sWS+3}], s45 offen")
    a(f"""
    v_lshrrev_b32 v7, 3, v2                ; r
    v_and_b32 v8, 7, v2                    ; c
    s_lshl_b32 s46, s{sWG}, 3              ; t0
    v_add_u32 v9, s46, v7                  ; row
    v_lshlrev_b32 v10, 12, v9
    v_lshl_add_u32 v10, v8, 4, v10
    s_lshl_b32 s45, s{sWave}, 10
    """)
    for l in range(8):
        a(f"buffer_load_dwordx4 v[{WR+4*l}:{WR+4*l+3}], v10, s[{sWSP}:{sWSP+3}], s45 offen offset:{128*l}")
    a(f"""
    v_and_b32 v10, 15, v9                  ; tpos
    v_and_b32 v11, 3, v8
    v_lshl_add_u32 v10, v11, 4, v10
    v_lshlrev_b32 v10, 4, v10
    v_lshrrev_b32 v11, 2, v8
    v_lshl_add_u32 v10, v11, 10, v10
    s_lshr_b32 s47, s46, 4
    s_mul_i32 s47, s47, {WSF_T}
    s_add_u32 s47, s47, {OFF_WSF}
    s_lshl_b32 s45, s{sWave}, 14           ; 8 groups * 2048
    s_add_u32 s47, s47, s45
    """)
    vK1, vOne, sK2 = 12, 14, 50
    gelu_consts(a, vK1, sK2, vOne)
    a("s_waitcnt vmcnt(8)")
    for i in range(36):
        a(f"v_lshlrev_b32 v{Z+2*i}, 16, v{RAW+i}")
        a(f"v_and_b32 v{Z+2*i+1}, 0xffff0000, v{RAW+i}")
    gelu_many(a, [Z+2*i for i in range(36)], vK1, sK2, vOne, [16, 18, 20, 22, 24, 26])
    a("v_mov_b32 v16, 0\nv_mov_b32 v17, 0\nv_mov_b32 v18, 0\nv_mov_b32 v19, 0")
    for i in range(36):
        r = Z + 2*i
        a(f"v_pk_add_f32 v[16:17], v[16:17], v[{r}:{r+1}]")
        a(f"v_pk_fma_f32 v[18:19], v[{r}:{r+1}], v[{r}:{r+1}], v[18:19]")
    a("v_add_f32 v16, v16, v17\nv_add_f32 v17, v18, v19")
    for r in (16, 17):
        a(f"v_add_f32_dpp v{r}, v{r}, v{r} row_ror:8 row_mask:0xf bank_mask:0xf")
    for op in ("v_permlane16_swap_b32", "v_permlane32_swap_b32"):
        for r in (16, 17):
            a(f"v_mov_b32 v20, v{r}\nv_mov_b32 v21, v{r}\n{op} v20, v21\nv_add_f32 v{r}, v20, v21")
    a("s_waitcnt vmcnt(0)")
    for l in range(8):
        a(f"s_add_u32 s45, s47, {2048*l}")
        a(f"buffer_store_dwordx4 v[{WR+4*l}:{WR+4*l+3}], v10, s[{sWS}:{sWS+3}], s45 offen {STB}")
    ST = 8 * LN_RS
    a(f"""
    s_lshl_b32 s45, s{sWave}, 6
    v_lshlrev_b32 v20, 3, v3
    v_add_u32 v21, s45, v20
    v_add_u32 v21, {ST}, v21
    ds_write_b64 v21, v[16:17]
    s_waitcnt lgkmcnt(0)
    s_barrier
    v_add_u32 v20, {ST}, v20
    ds_read_b64 v[22:23], v20
    ds_read_b64 v[24:25], v20 offset:64
    ds_read_b64 v[26:27], v20 offset:128
    ds_read_b64 v[28:29], v20 offset:192
    s_waitcnt lgkmcnt(0)
    v_pk_add_f32 v[22:23], v[22:23], v[24:25]
    v_pk_add_f32 v[26:27], v[26:27], v[28:29]
    v_pk_add_f32 v[22:23], v[22:23], v[26:27]
    v_mul_f32 v22, {hex(f2u(1.0/2304))}, v22      ; mean
    v_mul_f32 v23, {hex(f2u(1.0/2304))}, v23      ; E[z^2]
    v_fma_f32 v23, -v22, v22, v23                 ; var
    v_max_f32 v23, 0, v23
    v_add_f32 v23, {hex(f2u(1e-5))}, v23
    v_rsq_f32 v24, v23                            ; rstd
    v_mul_f32 v26, v22, v24
    v_sub_f32 v26, 0, v26                         ; -mean*rstd
    v_mov_b32 v25, v24
    v_mov_b32 v27, v26
    v_mul_u32_u24 v20, {LN_RS}, v3
    v_lshl_add_u32 v20, v4, 3, v20
    s_mul_i32 s45, s{sWave}, 1152
    v_add_u32 v20, s45, v20
    v_cmp_eq_u32 vcc, 1, v5
    """)
    def FA(kbl):
        gam, kl = divmod(kbl, 9)
        f0 = 288*gam
        if kl < 4: return f0 + 32*kl, f0 + 32*kl + 16
        if kl == 4: return f0 + 128, f0 + 128 + 144
        return f0 + 144 + 32*(kl-5), f0 + 144 + 32*(kl-5) + 16
    for i in range(9):
        A0, B0 = FA(2*i); A1, B1 = FA(2*i+1)
        r = Z + 8*i
        for p in range(4):
            a(f"v_pk_fma_f32 v[{r+2*p}:{r+2*p+1}], v[{r+2*p}:{r+2*p+1}], v[24:25], v[26:27]")
        d = 32 + 4*(i % 4)
        a(f"""
        v_cvt_pk_bf16_f32 v{d}, v{r}, v{r+1}
        v_cvt_pk_bf16_f32 v{d+1}, v{r+2}, v{r+3}
        v_cvt_pk_bf16_f32 v{d+2}, v{r+4}, v{r+5}
        v_cvt_pk_bf16_f32 v{d+3}, v{r+6}, v{r+7}
        v_mov_b32 v28, {A0*2}
        v_mov_b32 v29, {A1*2}
        v_cndmask_b32 v28, v28, v29, vcc
        v_add_u32 v28, v28, v20
        v_mov_b32 v29, {B0*2}
        v_mov_b32 v30, {B1*2}
        v_cndmask_b32 v29, v29, v30, vcc
        v_add_u32 v29, v29, v20
        ds_write_b64 v28, v[{d}:{d+1}]
        ds_write_b64 v29, v[{d+2}:{d+3}]
        """)
    a("s_waitcnt lgkmcnt(0)\ns_barrier")
    a(f"""
    v_bfe_u32 v20, v2, 2, 2                ; r
    v_mul_u32_u24 v20, {LN_RS}, v20
    v_and_b32 v21, 3, v2                   ; c
    v_lshl_add_u32 v20, v21, 3, v20
    v_lshrrev_b32 v21, 4, v2               ; group
    v_lshl_add_u32 v20, v21, 5, v20
    s_mul_i32 s45, s{sWave}, 1152
    v_add_u32 v20, s45, v20
    v_mul_u32_u24 v21, {Z2F_T}, v21
    v_and_b32 v22, 15, v2
    v_lshl_add_u32 v21, v22, 4, v21
    s_mul_i32 s45, s{sWave}, {36*Z2F_T}
    s_lshr_b32 s46, s{sWG}, 2
    s_lshl_b32 s46, s46, 10
    s_add_u32 s45, s45, s46
    s_and_b32 s46, s{sWG}, 3
    s_lshl_b32 s46, s46, 8
    s_add_u32 s45, s45, s46
    s_add_u32 s45, s45, {OFF_Z2F}
    """)
    for i in range(9):
        d = 32 + 4*i
        a(f"ds_read_b64_tr_b16 v[{d}:{d+1}], v20 offset:{i*128}")
        a(f"ds_read_b64_tr_b16 v[{d+2}:{d+3}], v20 offset:{i*128 + 4*LN_RS}")
    for i in range(9):
        d = 32 + 4*i
        a(f"s_waitcnt lgkmcnt({min(15, 2*(8-i))})")
        a(f"s_add_u32 s46, s45, {i*4*Z2F_T}")
        a(f"buffer_store_dwordx4 v[{d}:{d+3}], v21, s[{sWS}:{sWS+3}], s46 offen {STB}")

def b_common_setup(a, sWG, sWS, sWave):
    a(f"""
    s_load_dwordx2 s[8:9], s[0:1], {KA['ws']}
    s_load_dwordx2 s[10:11], s[0:1], {KA['win']}
    s_load_dwordx2 s[12:13], s[0:1], {KA['wsp']}
    s_load_dwordx2 s[14:15], s[0:1], {KA['bsp']}
    v_lshrrev_b32 v1, 6, v0
    v_and_b32 v2, 63, v0
    s_nop 0
    v_readfirstlane_b32 s{sWave}, v1
    s_waitcnt lgkmcnt(0)
    """)
    srd(a, sWS, 8, 9, WS_USED)

def ln_kernel(a, name):
    kernel_begin(a, name)
    a("s_cmp_ge_u32 s2, 256\ns_cbranch_scc1 L_ln_end")
    b_common_setup(a, 2, 24, 36)
    stamp(a, 0)
    ln_body(a, 2, 24, 36, "ln")
    if DIAG:
        a("s_waitcnt vmcnt(0)")
        stamp(a, 1)
        stamp_flush(a, 24, 36, 2, 2)
    a.label("L_ln_end")
    a("s_endpgm")
    kernel_end(a, name)

def spatial_body(a, sWG, sWS, sWave, pfx, sync_wait=None):
    sWIN, sBSP = 28, 32
    sTT, sFT = 37, 38
    srd(a, sWIN, 10, 11, D * 4608 * 2)
    srd(a, sBSP, 14, 15, S_TOK * 2)
    a(f"""
    s_and_b32 s40, s{sWG}, 7
    s_lshr_b32 s41, s{sWG}, 3
    s_and_b32 s42, s40, 3
    s_lshl_b32 s42, s42, 2
    s_and_b32 s43, s41, 3
    s_add_u32 s{sTT}, s42, s43            ; t tile 0..15
    s_lshr_b32 s42, s40, 2
    s_lshl_b32 s42, s42, 3
    s_lshr_b32 s43, s41, 2
    s_add_u32 s{sFT}, s42, s43            ; f tile 0..15
    """)
    ACC = 16
    Z1 = 88
    PB = 124
    RB = 188
    vL16, vRd, vTr = 3, 4, 5
    vW = [6, 7, 8, 9, 10]
    NWB = 9; DIST = 4
    a(f"""
    v_lshlrev_b32 v{vL16}, 4, v2
    v_add_u32 v{vRd}, {2*B_SLOT}, v{vL16}
    v_lshrrev_b32 v11, 4, v2
    v_bfe_u32 v12, v2, 2, 2
    v_lshl_add_u32 v12, v11, 2, v12
    v_mul_u32_u24 v12, 288, v12
    v_and_b32 v13, 3, v2
    v_lshl_add_u32 v{vTr}, v13, 3, v12
    s_mul_i32 s44, s{sFT}, 288            ; column byte offset in w_in (z1 half)
    """)
    for qi in range(5):
        a(f"""
        s_add_u32 s48, s{sWave}, {4*qi}
        s_lshl_b32 s48, s48, 6
        v_add_u32 v11, s48, v2           ; ci
        v_mul_u32_u24 v12, 3641, v11
        v_lshrrev_b32 v12, 16, v12       ; rho
        v_mul_u32_u24 v13, 18, v12
        v_sub_u32 v13, v11, v13          ; cc
        v_lshl_add_u32 v13, v13, 4, s44
        v_and_b32 v14, 32, v12
        v_bfe_u32 v15, v12, 2, 2
        v_lshl_add_u32 v14, v15, 3, v14
        v_bfe_u32 v15, v12, 4, 1
        v_lshl_add_u32 v14, v15, 2, v14
        v_and_b32 v15, 3, v12
        v_add_u32 v14, v14, v15          ; krow
        v_mul_u32_u24 v14, 9216, v14
        v_add_u32 v{vW[qi]}, v14, v13
        """)
    for i in range(72): a(f"v_mov_b32 v{ACC+i}, 0")
    sPb, sRb, sRo, sIt, sT0 = 52, 53, 54, 55, 56
    a(f"""
    s_lshl_b32 s{sT0}, s{sTT}, 3
    s_lshl_b32 s45, s{sWave}, 1
    s_add_u32 s{sT0}, s{sT0}, s45
    s_lshl_b32 s57, s{sWave}, 10
    """)
    def ring(phase):
        z1 = phase == 'z1'
        NST = 9 if z1 else 32
        UN = 3 if z1 else 4
        PSTR = XF_T if z1 else WSF_T
        lg = Lg(a)
        if z1:
            a(f"""
            s_mul_i32 s{sPb}, s{sT0}, {XF_T}
            s_add_u32 s{sPb}, s{sPb}, {OFF_XF}
            s_mov_b32 s{sRb}, 0
            """)
        else:
            a(f"""
            s_mul_i32 s{sPb}, s{sT0}, {WSF_T}
            s_add_u32 s{sPb}, s{sPb}, {OFF_WSF}
            s_mul_i32 s{sRb}, s{sFT}, {9*Z2F_T}
            s_add_u32 s{sRb}, s{sRb}, {OFF_Z2F}
            """)
        def issueP(pset):
            for kb in range(2):
                for tt in range(2):
                    r = PB + pset*16 + (kb*2+tt)*4
                    a(f"s_add_u32 s58, s{sPb}, {tt*PSTR + kb*1024}")
                    a(f"buffer_load_dwordx4 v[{r}:{r+3}], v{vL16}, s[{sWS}:{sWS+3}], s58 offen")
            a(f"s_add_u32 s{sPb}, s{sPb}, 2048")
        def issueR(slot):
            for qi in range(5):
                l = None
                if qi == 4:
                    l = a.newlabel(pfx+"_sk"); a(f"s_cmp_ge_u32 s{sWave}, 2\ns_cbranch_scc1 {l}")
                a(f"s_add_u32 m0, s57, {slot*B_SLOT + qi*4096}")
                if z1:
                    a(f"s_nop 0")
                    a(f"buffer_load_dwordx4 v{vW[qi]}, s[{sWIN}:{sWIN+3}], s{sRb} offen lds")
                else:
                    a(f"s_add_u32 s58, s{sRb}, s{60+qi}")
                    a(f"buffer_load_dwordx4 v{vL16}, s[{sWS}:{sWS+3}], s58 offen lds")
                if l: a.label(l)
            a(f"s_add_u32 s{sRb}, s{sRb}, {64*9216 if z1 else 2048}")
        if not z1:
            for qi in range(5):
                a(f"""
                s_add_u32 s58, s{sWave}, {4*qi}
                s_lshr_b32 s59, s58, 1
                s_mul_i32 s59, s59, {Z2F_T}
                s_and_b32 s58, s58, 1
                s_lshl_b32 s58, s58, 10
                s_add_u32 s{60+qi}, s58, s59
                """)
        def rdR(slot, n):
            kb, aa = divmod(n, 9); r = RB + (n % NWB)*4
            if z1:
                lg.issue(('r', n % NWB), f"ds_read_b64_tr_b16 v[{r}:{r+1}], v{vTr} offset:{slot*B_SLOT + kb*9216 + aa*32}")
                lg.issue(('r', n % NWB), f"ds_read_b64_tr_b16 v[{r+2}:{r+3}], v{vTr} offset:{slot*B_SLOT + kb*9216 + 4608 + aa*32}")
            else:
                base, so = (vL16, slot) if slot < 2 else (vRd, slot - 2)
                lg.issue(('r', n % NWB), f"ds_read_b128 v[{r}:{r+3}], v{base} offset:{so*B_SLOT + (aa*2+kb)*1024}")
        def first_reads(slot):
            for n in range(DIST): rdR(slot, n)
        if z1:
            issueP(0); issueR(0); issueR(1)
            a("s_waitcnt vmcnt(4)")
        else:
            issueP(0); issueR(0); issueP(1); issueR(1); issueR(2)
            a("s_waitcnt vmcnt(12)")
        a("s_barrier")
        if z1: issueP(1); issueR(2)
        else: issueP(2); issueR(3)
        first_reads(0)
        lg.wait(('r', 0))
        a(f"s_mov_b32 s{sIt}, 0")
        L = f"L_{pfx}_{phase}_loop"
        a.label(L)
        nit = NST // UN
        for st in range(UN):
            for n in range(18):
                kb, aa = divmod(n, 9)
                fill = []
                if n + DIST < 18:
                    nn = n + DIST; kb2, a2 = divmod(nn, 9); r2 = RB + (nn % NWB)*4
                    if z1:
                        fill.append(lambda nn=nn, kb2=kb2, a2=a2, r2=r2: lg.issue(('r', nn % NWB), f"ds_read_b64_tr_b16 v[{r2}:{r2+1}], v{vTr} offset:{st*B_SLOT + kb2*9216 + a2*32}"))
                        fill.append(lambda nn=nn, kb2=kb2, a2=a2, r2=r2: lg.issue(('r', nn % NWB), f"ds_read_b64_tr_b16 v[{r2+2}:{r2+3}], v{vTr} offset:{st*B_SLOT + kb2*9216 + 4608 + a2*32}"))
                    else:
                        fill.append(lambda nn=nn: rdR(st, nn))
                if n == 18 - DIST:
                    lg.waitall()
                    lx = None
                    if st == UN - 1:
                        lx = a.newlabel(pfx+"_last")
                        a(f"s_cmp_eq_u32 s{sIt}, {nit-1}\ns_cbranch_scc1 {lx}")
                    if z1:
                        lw = a.newlabel(pfx+"_w"); lw2 = a.newlabel(pfx+"_w2")
                        if st == 1:
                            a(f"s_cmp_eq_u32 s{sIt}, {nit-1}\ns_cbranch_scc1 {lw}\ns_waitcnt vmcnt(4)\ns_branch {lw2}\n{lw}:\ns_waitcnt vmcnt(0)\n{lw2}:")
                        else:
                            a("s_waitcnt vmcnt(4)")
                    else:
                        lw = a.newlabel(pfx+"_w"); lw2 = a.newlabel(pfx+"_w2")
                        if st >= 1:
                            tail = {1: 8, 2: 0, 3: 12}[st]
                            a(f"s_cmp_eq_u32 s{sIt}, {nit-1}\ns_cbranch_scc1 {lw}\ns_waitcnt vmcnt(12)\ns_branch {lw2}\n{lw}:\ns_waitcnt vmcnt({tail})\n{lw2}:")
                        else:
                            a("s_waitcnt vmcnt(12)")
                    a("s_barrier")
                    j_off = st + 1
                    dP, dR = (1, 2) if z1 else (2, 3)
                    for (d, fn, name) in ((dP, lambda: issueP((st + 1 + dP) % UN), 'p'), (dR, lambda: issueR((st + 1 + dR) % UN), 'r')):
                        mx = (NST - 1 - j_off - d // 1) // UN if (NST - 1 - j_off - d) >= 0 else -1
                        if mx >= nit - 1: fn()
                        else:
                            ls = a.newlabel(pfx+"_ns")
                            a(f"s_cmp_gt_u32 s{sIt}, {mx}\ns_cbranch_scc1 {ls}")
                            fn(); a.label(ls)
                    first_reads((st + 1) % UN)
                    if lx: a.label(lx)
                r = RB + (n % NWB)*4
                for tt in range(2):
                    d = ACC + (aa*2+tt)*4
                    pr = PB + st*16 + (kb*2+tt)*4
                    mf16(a, d, r, pr)
                    if fill: fill.pop(0)()
                while fill: fill.pop(0)()
                if n + 1 < 18 - DIST: lg.wait(('r', (n + 1) % NWB))
                if n == 17: lg.wait(('r', 0))
        a(f"s_add_u32 s{sIt}, s{sIt}, 1\ns_cmp_lt_u32 s{sIt}, {nit}\ns_cbranch_scc1 {L}")
        lg.q = []
    ring('z1')
    stamp(a, 1)
    vK1, vOne, sK2 = 6, 8, 50
    gelu_consts(a, vK1, sK2, vOne)
    gelu_many(a, [ACC + 2*i for i in range(36)], vK1, sK2, vOne, [188, 190, 192, 194, 196, 198])
    for i in range(36): a(f"v_cvt_pk_bf16_f32 v{Z1+i}, v{ACC+2*i}, v{ACC+2*i+1}")
    for i in range(72): a(f"v_mov_b32 v{ACC+i}, 0")
    a("s_barrier")
    if sync_wait: sync_wait()
    stamp(a, 2)
    ring('sp')
    stamp(a, 3)
    a(f"""
    v_and_b32 v6, 15, v2                  ; t16
    s_lshl_b32 s44, s{sT0}, 4
    v_add_u32 v6, s44, v6                 ; t (tt'=0)
    v_lshlrev_b32 v7, 1, v6
    buffer_load_ushort v8, v7, s[{sBSP}:{sBSP+3}], 0 offen
    buffer_load_ushort v9, v7, s[{sBSP}:{sBSP+3}], 0 offen offset:32
    v_lshlrev_b32 v7, 2, v6
    s_mov_b32 s45, {OFF_GATE}
    buffer_load_dword v10, v7, s[{sWS}:{sWS+3}], s45 offen
    buffer_load_dword v11, v7, s[{sWS}:{sWS+3}], s45 offen offset:64
    s_lshr_b32 s46, s{sFT}, 1             ; gamma
    s_and_b32 s47, s{sFT}, 1              ; pi
    s_mul_i32 s46, s46, 9
    s_mul_i32 s48, s47, 5
    s_add_u32 s48, s48, s46
    s_add_u32 s48, s48, 18
    s_add_u32 s46, s46, {18+4}
    s_mul_i32 s49, s{sT0}, {AF_T}
    s_add_u32 s49, s49, {OFF_AF}
    s_lshl_b32 s48, s48, 10
    s_add_u32 s48, s48, s49
    s_lshl_b32 s46, s46, 10
    s_add_u32 s46, s46, s49
    s_lshl_b32 s47, s47, 3
    s_add_u32 s46, s46, s47
    s_waitcnt vmcnt(0)
    v_lshlrev_b32 v8, 16, v8
    v_lshlrev_b32 v9, 16, v9
    v_sub_f32 v10, 1.0, v10
    v_sub_f32 v11, 1.0, v11
    """)
    def uval(aa, tt):
        r = ACC + (aa*2+tt)*4; z = Z1 + (aa*2+tt)*2
        b = 8 + tt; g = 10 + tt
        a(f"""
        v_add_f32 v{r}, v{r}, v{b}
        v_add_f32 v{r+1}, v{r+1}, v{b}
        v_add_f32 v{r+2}, v{r+2}, v{b}
        v_add_f32 v{r+3}, v{r+3}, v{b}
        v_lshlrev_b32 v12, 16, v{z}
        v_and_b32 v13, 0xffff0000, v{z}
        v_lshlrev_b32 v14, 16, v{z+1}
        v_and_b32 v15, 0xffff0000, v{z+1}
        v_mul_f32 v12, v12, v{g}
        v_mul_f32 v13, v13, v{g}
        v_mul_f32 v14, v14, v{g}
        v_mul_f32 v15, v15, v{g}
        v_pk_mul_f32 v[{r}:{r+1}], v[{r}:{r+1}], v[12:13]
        v_pk_mul_f32 v[{r+2}:{r+3}], v[{r+2}:{r+3}], v[14:15]
        """)
        return r
    cnt = 0
    for tt in range(2):
        for pr in range(4):
            r0 = uval(2*pr, tt); r1 = uval(2*pr+1, tt)
            d = PB + 4*(cnt % 8); cnt += 1
            a(f"""
            v_cvt_pk_bf16_f32 v{d}, v{r0}, v{r0+1}
            v_cvt_pk_bf16_f32 v{d+1}, v{r0+2}, v{r0+3}
            v_cvt_pk_bf16_f32 v{d+2}, v{r1}, v{r1+1}
            v_cvt_pk_bf16_f32 v{d+3}, v{r1+2}, v{r1+3}
            s_add_u32 s45, s48, {pr*1024 + tt*AF_T}
            buffer_store_dwordx4 v[{d}:{d+3}], v{vL16}, s[{sWS}:{sWS+3}], s45 offen {STU}
            """)
        r0 = uval(8, tt)
        d = PB + 4*(cnt % 8); cnt += 1
        a(f"""
        v_cvt_pk_bf16_f32 v{d}, v{r0}, v{r0+1}
        v_cvt_pk_bf16_f32 v{d+1}, v{r0+2}, v{r0+3}
        s_add_u32 s45, s46, {tt*AF_T}
        buffer_store_dwordx2 v[{d}:{d+1}], v{vL16}, s[{sWS}:{sWS+3}], s45 offen {STU}
        """)

def spatial_kernel(a, name):
    kernel_begin(a, name)
    a("s_cmp_ge_u32 s2, 256\ns_cbranch_scc1 L_sp_end")
    b_common_setup(a, 2, 24, 36)
    stamp(a, 0)
    spatial_body(a, 2, 24, 36, "sp")
    if DIAG:
        a("s_waitcnt vmcnt(0)")
        stamp(a, 4)
        stamp_flush(a, 24, 36, 3, 5)
    a.label("L_sp_end")
    a("s_endpgm")
    kernel_end(a, name)
```

```python
from asmlib import Asm
import math

S_TOK = 2048; D = 576; H = 32; DH = 18; F = 2304
KV_TILE = 2368; KV_HEAD = 64 * KV_TILE
QF_TILE = 1152; QF_HEAD = 64 * QF_TILE
OFF_KV   = 0
OFF_QF   = 0x500000
OFF_Z2D  = 0x800000
OFF_XF   = 0x1200000
OFF_WSF  = 0x1500000
OFF_GATE = 0x1E00000
OFF_Z2F  = 0x1F00000
OFF_AF   = 0x2900000
WS_USED  = 0x3A00000
Z2D_T = 72 * 1024
XF_T  = 18 * 1024
WSF_T = 64 * 1024
Z2F_T = 64 * 1024
AF_T  = 90 * 1024
OOB = 0x40000000
QSCALE = (18 ** -0.5) * math.log2(math.e)

KA = dict(x=0, wqkv=8, wo=16, bx=24, win=32, wsp=40, bsp=48, wout=56, gate=64, out=72, dbg=80, ws=88)

def f2u(x):
    import struct
    return struct.unpack('<I', struct.pack('<f', x))[0]

def srd(a, s, base_lo, base_hi, size):
    a(f"s_mov_b32 s{s}, s{base_lo}")
    a(f"s_and_b32 s{s+1}, s{base_hi}, 0xffff")
    a(f"s_mov_b32 s{s+2}, {hex(size)}")
    a(f"s_mov_b32 s{s+3}, 0x20000")

def kernel_begin(a, name):
    a(f".text\n.globl {name}\n.p2align 8\n.type {name},@function\n{name}:")

def kernel_end(a, name, vgpr=256, sgpr=96):
    a(f""".section .rodata,"a"
.p2align 6
.amdhsa_kernel {name}
.amdhsa_next_free_vgpr {vgpr}
.amdhsa_next_free_sgpr {sgpr}
.amdhsa_accum_offset {((vgpr+3)//4)*4}
.amdhsa_group_segment_fixed_size 0
.amdhsa_kernarg_size 96
.amdhsa_user_sgpr_count 2
.amdhsa_user_sgpr_kernarg_segment_ptr 1
.amdhsa_system_sgpr_workgroup_id_x 1
.amdhsa_float_denorm_mode_32 3
.end_amdhsa_kernel""")

def mf16(a, d, x, y, c=None):
    cs = f"v[{d}:{d+3}]" if c is None else (c if isinstance(c, str) else f"v[{c}:{c+3}]")
    a(f"v_mfma_f32_16x16x32_bf16 v[{d}:{d+3}], v[{x}:{x+3}], v[{y}:{y+3}], {cs}")

def mf32(a, d, x, y, c=None):
    cs = f"v[{d}:{d+15}]" if c is None else (c if isinstance(c, str) else f"v[{c}:{c+15}]")
    a(f"v_mfma_f32_32x32x16_bf16 v[{d}:{d+15}], v[{x}:{x+3}], v[{y}:{y+3}], {cs}")

def csel(a, dst, A, B):
    a(f"s_mov_b32 {dst}, {B}")
    a(f"s_cselect_b32 {dst}, {A}, {dst}")

import os
DIAG = os.environ.get("DIAG", "0") == "1"
OFF_STAMP = 0x3500000
def stamp(a, i):
    if not DIAG: return
    a(f"s_memrealtime s[92:93]")
    a(f"s_memtime s[94:95]")
    a(f"s_waitcnt lgkmcnt(0)")
    a(f"s_mov_b32 s{70+2*i}, s92")
    a(f"s_mov_b32 s{71+2*i}, s94")
def stamp_flush(a, sWS, swave, slot, n):
    if not DIAG: return
    a(f"s_lshl_b32 s92, s2, 3")
    a(f"s_add_u32 s92, s92, s{swave}")
    a(f"s_lshl_b32 s92, s92, 6")
    a(f"s_add_u32 s92, s92, {OFF_STAMP + slot * 262144}")
    for i in range(2*n):
        a(f"v_mov_b32 v250, s{70+i}")
        a(f"v_mov_b32 v251, {4*i}")
        a(f"buffer_store_dword v250, v251, s[{sWS}:{sWS+3}], s92 offen")

def itstamp(a, sIt, vreg=252):
    if not DIAG: return
    a("s_memtime s[94:95]")
    a("s_waitcnt lgkmcnt(0)")
    a(f"s_mov_b32 m0, s{sIt}")
    a(f"s_nop 3")
    a(f"v_writelane_b32 v{vreg}, s94, m0")
def itstamp_flush(a, sWS, swave, vlane, slot, vreg=252):
    if not DIAG: return
    a(f"s_lshl_b32 s92, s2, 3")
    a(f"s_add_u32 s92, s92, s{swave}")
    a(f"s_lshl_b32 s92, s92, 8")
    a(f"s_add_u32 s92, s92, {OFF_STAMP + 0x100000 + slot * 0x100000}")
    a(f"v_lshlrev_b32 v251, 2, v{vlane}")
    a(f"buffer_store_dword v{vreg}, v251, s[{sWS}:{sWS+3}], s92 offen")
```

```python
from common import *
from k1 import Lg
EXP = os.environ.get('EXP','')
F_SLOT = 4096
F_NSLOT = 4
F_LDS = 65536

def final_body(a, sWG, sWS, sWave, pfx, wait_o=None, wait_u=None):
    sWO, sWOUT, sOUT, sAF = 28, 32, 40, 44
    a(f"""
    s_load_dwordx2 s[10:11], s[0:1], {KA['wo']}
    s_load_dwordx2 s[12:13], s[0:1], {KA['wout']}
    s_load_dwordx2 s[14:15], s[0:1], {KA['out']}
    s_and_b32 s48, s{sWG}, 7
    s_lshr_b32 s49, s{sWG}, 3
    s_lshl_b32 s48, s48, 5
    s_add_u32 s48, s48, s49               ; L = xcd*32 + i
    s_waitcnt lgkmcnt(0)
    s_cmp_ge_u32 s48, 234
    s_cbranch_scc1 L_{pfx}_done
    s_mul_i32 s49, s48, 7282
    s_lshr_b32 s49, s49, 16               ; mt = L/9
    s_mul_i32 s50, s49, 9
    s_sub_u32 s50, s48, s50               ; nt
    """)
    sMT, sNT = 49, 50
    srd(a, sWO, 10, 11, D * D * 2)
    srd(a, sWOUT, 12, 13, F * D * 2)
    srd(a, sOUT, 14, 15, S_TOK * D * 2)
    a(f"""
    s_add_u32 s{sAF}, s8, {OFF_AF}
    s_addc_u32 s{sAF+1}, s9, 0
    s_and_b32 s{sAF+1}, s{sAF+1}, 0xffff
    s_mov_b32 s{sAF+2}, {128*AF_T}
    s_mov_b32 s{sAF+3}, 0x20000
    """)
    ACC = 16
    PB = 96
    RB = 176
    vL16, vDm, vDm2 = 3, 4, 5
    vTr = [6, 7, 8, 9]
    a(f"""
    v_lshlrev_b32 v{vL16}, 4, v2
    v_lshrrev_b32 v10, 3, v2
    v_and_b32 v11, 7, v2
    v_bfe_u32 v12, v10, 1, 2
    v_lshlrev_b32 v12, 1, v12
    v_xor_b32 v11, v11, v12
    v_lshlrev_b32 v11, 4, v11
    s_lshl_b32 s51, s{sNT}, 7
    v_add_u32 v11, s51, v11
    v_mul_u32_u24 v12, 1152, v10
    v_add_u32 v{vDm}, v12, v11
    v_lshrrev_b32 v12, 2, v10
    v_lshlrev_b32 v12, 2, v12
    v_bfe_u32 v13, v10, 1, 1
    v_add_u32 v12, v12, v13
    v_mul_u32_u24 v12, 18, v12
    v_and_b32 v13, 1, v10
    v_add_u32 v12, v12, v13
    v_mul_u32_u24 v12, 1152, v12
    v_add_u32 v{vDm2}, v12, v11
    v_lshrrev_b32 v10, 4, v2
    v_bfe_u32 v11, v2, 2, 2
    v_lshl_add_u32 v10, v10, 2, v11       ; row
    v_bfe_u32 v11, v10, 1, 2
    v_lshlrev_b32 v11, 5, v11             ; ((row>>1)&3)*32
    v_lshlrev_b32 v10, 7, v10
    v_and_b32 v12, 3, v2
    v_lshl_add_u32 v10, v12, 3, v10
    s_lshl_b32 s51, s{sWave}, 14
    v_add_u32 v10, s51, v10
    """)
    for aa in range(4):
        a(f"v_xor_b32 v12, {aa*32}, v11\nv_add_u32 v{vTr[aa]}, v10, v12")
    for i in range(80): a(f"v_mov_b32 v{ACC+i}, 0")
    sStep, sNo, sA, sRow = 52, 53, 54, 55
    a(f"""
    s_mul_i32 s56, s{sMT}, {5*AF_T}
    s_cmp_lt_u32 s{sWave}, 2
    s_cselect_b32 s{sNo}, 5, 4
    s_lshl_b32 s57, s{sWave}, 14
    """)
    def issue(slot_expr_reg, pset):
        lo = a.newlabel(pfx+"_io"); lx = a.newlabel(pfx+"_ix"); le = a.newlabel(pfx+"_ie"); ln = a.newlabel(pfx+"_in")
        a(f"""
        s_add_u32 s58, s{sNo}, 18
        s_cmp_ge_u32 s{sStep}, s58
        s_cbranch_scc1 {ln}
        s_lshl_b32 s59, s{slot_expr_reg}, 12
        s_add_u32 s59, s59, s57
        s_cmp_lt_u32 s{sStep}, s{sNo}
        s_cbranch_scc1 {lo}
        s_sub_u32 s60, s{sStep}, s{sNo}      ; j
        s_mul_i32 s61, s{sWave}, 18
        s_add_u32 s61, s61, s60              ; kbu
        s_add_u32 s62, s61, 18
        s_cmp_ge_u32 s60, 9
        s_cselect_b32 s63, 9, 0
        s_cselect_b32 s64, 288, 0
        s_sub_u32 s63, s60, s63              ; kl
        s_mul_i32 s65, s{sWave}, 576
        s_add_u32 s64, s64, s65              ; 288*gamma
        s_lshl_b32 s65, s63, 5               ; 32*kl
        s_cmp_gt_u32 s63, 4
        s_cselect_b32 s66, 16, 0
        s_sub_u32 s65, s65, s66
        s_add_u32 s64, s64, s65              ; F16(kbu,0)
        s_cmp_eq_u32 s63, 4
        s_cselect_b32 s65, 144, 16
        s_mul_i32 s64, s64, 1152
        s_mul_i32 s65, s65, 1152
        """)
        for q in range(4):
            a(f"s_add_u32 m0, s59, {q*1024}")
            if q == 0: a(f"s_mov_b32 s66, s64")
            elif q == 1: a(f"s_add_u32 s66, s64, {8*1152}")
            elif q == 2: a(f"s_add_u32 s66, s64, s65")
            else: a(f"s_add_u32 s66, s66, {8*1152}")
            a(f"buffer_load_dwordx4 v{vDm}, s[{sWOUT}:{sWOUT+3}], s66 offen lds")
        a(f"s_branch {le}")
        a.label(lo)
        a(f"""
        s_lshl_b32 s62, s{sStep}, 2
        s_add_u32 s62, s62, s{sWave}
        s_cmp_ge_u32 s62, 16
        s_cbranch_scc1 {lx}
        s_mul_i32 s64, s62, {36*1152}
        """)
        for q in range(4):
            a(f"s_add_u32 m0, s59, {q*1024}")
            a(f"s_add_u32 s66, s64, {(18*(q&1) + 8*(q>>1))*1152}")
            a(f"buffer_load_dwordx4 v{vDm}, s[{sWO}:{sWO+3}], s66 offen lds")
        a(f"s_branch {le}")
        a.label(lx)
        a(f"""
        s_sub_u32 s64, s62, 16
        s_mul_i32 s64, s64, {18*16*1152}
        """)
        for q in range(4):
            a(f"s_add_u32 m0, s59, {q*1024}")
            a(f"s_add_u32 s66, s64, {(18*(8*(q&1) + 2*(q>>1)) + 16)*1152}")
            a(f"buffer_load_dwordx4 v{vDm2}, s[{sWO}:{sWO+3}], s66 offen lds")
        a.label(le)
        a(f"s_lshl_b32 s62, s62, 10\ns_add_u32 s62, s62, s56")
        for i in range(5):
            r = PB + pset*20 + 4*i
            a(f"s_add_u32 s66, s62, {i*AF_T}")
            a(f"buffer_load_dwordx4 v[{r}:{r+3}], v{vL16}, s[{sAF}:{sAF+3}], s66 offen")
        a.label(ln)
        a(f"s_add_u32 s{sStep}, s{sStep}, 1")
    if wait_o: wait_o()
    if wait_u: wait_u()
    stamp(a, 1)
    a(f"s_mov_b32 s{sStep}, 0")
    sSl = 67
    for s in range(3):
        a(f"s_mov_b32 s{sSl}, {s}")
        issue(sSl, s)
    sC = 68
    a(f"s_mov_b32 s{sC}, 0")
    L = f"L_{pfx}_loop"
    a.label(L)
    for st in range(4):
        lsk = a.newlabel(pfx+"_skip")
        a(f"""
        s_add_u32 s58, s{sNo}, 18
        s_cmp_ge_u32 s{sC}, s58
        s_cbranch_scc1 {lsk}
        """)
        lw1 = a.newlabel(pfx+"_w1"); lw0 = a.newlabel(pfx+"_w0"); lg_ = a.newlabel(pfx+"_wg")
        a(f"""
        s_sub_u32 s58, s58, s{sC}
        s_cmp_eq_u32 s58, 1
        s_cbranch_scc1 {lw0}
        s_cmp_eq_u32 s58, 2
        s_cbranch_scc1 {lw1}
        s_waitcnt vmcnt(18)
        s_branch {lg_}
        {lw1}:
        s_waitcnt vmcnt(9)
        s_branch {lg_}
        {lw0}:
        s_waitcnt vmcnt(0)
        {lg_}:
        """)
        for aa in range(4):
            r = RB + (st % 2)*16 + aa*4
            a(f"ds_read_b64_tr_b16 v[{r}:{r+1}], v{vTr[aa]} offset:{st*F_SLOT}")
            a(f"ds_read_b64_tr_b16 v[{r+2}:{r+3}], v{vTr[aa]} offset:{st*F_SLOT + 2048}")
        for aa in range(4):
            a(f"s_waitcnt lgkmcnt({6 - 2*aa})")
            r = RB + (st % 2)*16 + aa*4
            for i in range(5):
                mf16(a, ACC + (i*4+aa)*4, r, PB + st*20 + 4*i)
        a(f"s_mov_b32 s{sSl}, {(st+3) % 4}")
        issue(sSl, (st + 3) % 4)
        a.label(lsk)
        a(f"s_add_u32 s{sC}, s{sC}, 1")
    a(f"s_cmp_lt_u32 s{sC}, 24\ns_cbranch_scc1 {L}")
    stamp(a, 2)
    a("s_waitcnt lgkmcnt(0)\ns_barrier")
    a(f"s_mul_i32 s58, s{sWave}, 0")
    for aa in range(4):
        ls = a.newlabel(pfx+"_rw")
        a(f"""
        s_cmp_eq_u32 s{sWave}, {aa}
        s_cbranch_scc1 {ls}
        s_sub_u32 s58, s{sWave}, {aa+1}
        s_and_b32 s58, s58, 3
        s_add_u32 s58, s58, {aa*3}
        s_mul_i32 s58, s58, {5*1024}
        v_add_u32 v10, s58, v{vL16}
        """)
        for i in range(5):
            r = ACC + (i*4+aa)*4
            a(f"ds_write_b128 v10, v[{r}:{r+3}] offset:{i*1024}")
        a.label(ls)
    a("s_waitcnt lgkmcnt(0)\ns_barrier")
    OWN = 96
    for aa in range(4):
        ls = a.newlabel(pfx+"_own")
        a(f"s_cmp_lg_u32 s{sWave}, {aa}\ns_cbranch_scc1 {ls}")
        for i in range(5):
            r = ACC + (i*4+aa)*4
            for j in range(4): a(f"v_mov_b32 v{OWN+4*i+j}, v{r+j}")
        a.label(ls)
    a(f"s_mul_i32 s58, s{sWave}, {15*1024}\nv_add_u32 v10, s58, v{vL16}")
    for rk in range(3):
        for i in range(5):
            r = 120 + (rk*5+i)*4
            a(f"ds_read_b128 v[{r}:{r+3}], v10 offset:{(rk*5+i)*1024}")
    a("s_waitcnt lgkmcnt(0)")
    for rk in range(3):
        for i in range(5):
            r = 120 + (rk*5+i)*4
            a(f"v_pk_add_f32 v[{OWN+4*i}:{OWN+4*i+1}], v[{OWN+4*i}:{OWN+4*i+1}], v[{r}:{r+1}]")
            a(f"v_pk_add_f32 v[{OWN+4*i+2}:{OWN+4*i+3}], v[{OWN+4*i+2}:{OWN+4*i+3}], v[{r+2}:{r+3}]")
    a(f"""
    v_and_b32 v10, 15, v2                 ; t16
    v_lshrrev_b32 v11, 4, v2              ; g
    s_mul_i32 s58, s{sMT}, 80
    v_add_u32 v10, s58, v10               ; row
    v_mul_u32_u24 v10, 1152, v10
    v_lshl_add_u32 v10, v11, 3, v10       ; + 4g*2
    s_lshl_b32 s58, s{sNT}, 7
    s_lshl_b32 s59, s{sWave}, 5
    s_add_u32 s58, s58, s59               ; (64 nt + 16 a)*2
    """)
    for i in range(5):
        r = OWN + 4*i
        a(f"""
        v_cvt_pk_bf16_f32 v{r}, v{r}, v{r+1}
        v_cvt_pk_bf16_f32 v{r+1}, v{r+2}, v{r+3}
        v_add_u32 v11, {i*16*1152}, v10
        buffer_store_dwordx2 v[{r}:{r+1}], v11, s[{sOUT}:{sOUT+3}], s58 offen
        """)
    a.label(f"L_{pfx}_done")

def final_kernel(a, name):
    kernel_begin(a, name)
    a("s_cmp_ge_u32 s2, 256\ns_cbranch_scc1 L_fi_end")
    a(f"""
    s_load_dwordx2 s[8:9], s[0:1], {KA['ws']}
    v_lshrrev_b32 v1, 6, v0
    v_and_b32 v2, 63, v0
    s_nop 0
    v_readfirstlane_b32 s36, v1
    s_waitcnt lgkmcnt(0)
    """)
    srd(a, 24, 8, 9, WS_USED)
    stamp(a, 0)
    final_body(a, 2, 24, 36, "fi")
    if DIAG:
        a("s_waitcnt vmcnt(0)")
        stamp(a, 3)
        stamp_flush(a, 24, 36, 4, 4)
    a.label("L_fi_end")
    a("s_endpgm")
    kernel_end(a, name)
```

```python
from common import *
EXP = os.environ.get('EXP','')
STM = os.environ.get('STM','')
STA = os.environ.get('STA','sc1')

class Lg:
    def __init__(self, a): self.a = a; self.q = []
    def issue(self, tag, text): self.a(text); self.q.append(tag)
    def wait(self, tag):
        if tag not in self.q: return
        idx = max(i for i, t in enumerate(self.q) if t == tag)
        n = len(self.q) - idx - 1
        assert n <= 15, n
        self.a(f"s_waitcnt lgkmcnt({n})")
        self.q = self.q[idx + 1:]
    def waitall(self):
        if self.q: self.a("s_waitcnt lgkmcnt(0)")
        self.q = []

K1_STAGE = 51200
K1_WOFF = 32768
K1_LDS = 3 * K1_STAGE

def k1_kernel(a, name="k1_kernel"):
    kernel_begin(a, name)
    sX, sW, sWS = 16, 20, 24
    sWSP, sG = 28, 32
    sWave, sMT, sNT, sLW = 36, 37, 38, 39
    sRS, sCOL = 45, 46
    a(f"""
    s_cmp_ge_u32 s2, 256
    s_cbranch_scc1 L_k1_end
    s_load_dwordx2 s[4:5], s[0:1], {KA['x']}
    s_load_dwordx2 s[6:7], s[0:1], {KA['wqkv']}
    s_load_dwordx2 s[8:9], s[0:1], {KA['ws']}
    s_load_dwordx2 s[10:11], s[0:1], {KA['win']}
    s_load_dwordx2 s[12:13], s[0:1], {KA['wsp']}
    s_load_dwordx2 s[14:15], s[0:1], {KA['gate']}
    v_lshrrev_b32 v1, 6, v0
    v_and_b32 v2, 63, v0                 ; lane
    s_and_b32 s40, s2, 7                 ; xcd
    s_lshr_b32 s41, s2, 3
    v_readfirstlane_b32 s{sWave}, v1
    s_and_b32 s42, s40, 1                ; mg
    s_lshr_b32 s43, s40, 1               ; ng
    s_and_b32 s44, s41, 3
    s_lshl_b32 s42, s42, 2
    s_add_u32 s{sMT}, s42, s44           ; mt 0..7
    s_lshr_b32 s44, s41, 2
    s_mul_i32 s43, s43, 7
    s_add_u32 s{sNT}, s43, s44           ; nt 0..27 (i<28)
    s_waitcnt lgkmcnt(0)
    """)
    stamp(a, 0)
    srd(a, sWS, 8, 9, WS_USED)
    a(f"""
    s_cmp_ge_u32 s{sWave}, 4
    s_cbranch_scc1 L_k1_loader
    """)
    a(f"s_cmp_ge_u32 s41, 28\ns_cbranch_scc1 L_k1_spare")
    vXr = [[3, 4], [5, 6], [7, 8]]; vWr = [9, 10, 11]
    XF = 16; WF = 208; NWB = 9; ACC = 48
    a(f"""
    s_cmp_lt_u32 s{sNT}, 8
    s_cselect_b32 s58, 72, 8
    v_and_b32 v12, 15, v2                ; t
    v_lshrrev_b32 v13, 4, v2             ; g
    v_and_b32 v14, 7, v12
    v_xor_b32 v14, v14, v13              ; g ^ (t&7)
    v_lshlrev_b32 v14, 4, v14
    s_lshl_b32 s48, s{sWave}, 13
    v_lshl_add_u32 v15, v12, 7, v14
    v_add_u32 v3, s48, v15
    v_xor_b32 v4, 64, v3
    v_add_u32 v5, {K1_STAGE}, v3
    v_add_u32 v6, {K1_STAGE}, v4
    v_add_u32 v7, {2*K1_STAGE}, v3
    v_add_u32 v8, {2*K1_STAGE}, v4
    v_bfe_u32 v14, v2, 2, 2              ; r
    v_lshl_add_u32 v14, v13, 2, v14      ; 4g+r
    v_mul_u32_u24 v14, 288, v14
    v_and_b32 v15, 3, v2
    v_mul_u32_u24 v15, s58, v15
    v_add_u32 v14, v14, v15
    v_add_u32 v9, {K1_WOFF}, v14
    v_add_u32 v10, {K1_WOFF + K1_STAGE}, v14
    v_add_u32 v11, {K1_WOFF + 2*K1_STAGE}, v14
    """)
    sXFst, sXFkb, sXFb = 66, 67, 68; vL16 = 12
    a(f"""
    s_cmp_lt_u32 s{sNT}, 18
    s_cselect_b32 s{sXFst}, s{sNT}, 200
    s_and_b32 s{sXFkb}, s{sXFst}, 1
    s_lshr_b32 s{sXFst}, s{sXFst}, 1
    s_lshl_b32 s58, s{sMT}, 4
    s_lshl_b32 s59, s{sWave}, 2
    s_add_u32 s58, s58, s59               ; ttile16
    s_mul_i32 s58, s58, {XF_T}
    s_lshl_b32 s59, s{sNT}, 10
    s_add_u32 s58, s58, s59
    s_add_u32 s{sXFb}, s58, {OFF_XF}
    v_lshlrev_b32 v{vL16}, 4, v2
    """)
    for i in range(144): a(f"v_mov_b32 v{ACC+i}, 0")
    sIt, sRd = 53, 55
    def mainloop(swap, tag, astride):
        lg = Lg(a)
        def rdx(slot, kb, tt):
            r = XF + (kb*4+tt)*4
            lg.issue(('x', kb, tt), f"ds_read_b128 v[{r}:{r+3}], v{vXr[slot][kb]} offset:{tt*2048}")
        def rdw(slot, n):
            kb, aa = divmod(n, 9)
            r = WF + (n % NWB)*4
            if 'norw' in EXP: return
            lg.issue(('w', n % NWB), f"ds_read_b64_tr_b16 v[{r}:{r+1}], v{vWr[slot]} offset:{kb*9216 + aa*astride}")
            lg.issue(('w', n % NWB), f"ds_read_b64_tr_b16 v[{r+2}:{r+3}], v{vWr[slot]} offset:{kb*9216 + 4608 + aa*astride}")
        DIST = 4
        def first_reads(slot):
            for tt in range(4): rdx(slot, 0, tt)
            for n in range(DIST): rdw(slot, n)
        a(f"s_mov_b32 s{sIt}, 0")
        a("s_barrier")
        stamp(a, 2)
        first_reads(0)
        lg.wait(('x', 0, 3)); lg.wait(('w', 0))
        L = f"L_k1_loop_{tag}"
        a.label(L)
        for st in range(3):
            if 'its' in EXP:
                a(f"s_mul_i32 s69, s{sIt}, 3\ns_add_u32 s69, s69, {st}")
                itstamp(a, 69); lg.q = []
            for n in range(18):
                kb, aa = divmod(n, 9)
                fill = []
                if n + DIST < 18:
                    nn = n + DIST; kb2, a2 = divmod(nn, 9); r2 = WF + (nn % NWB)*4
                    if 'norw' not in EXP:
                        fill.append(lambda nn=nn, kb2=kb2, a2=a2, r2=r2: lg.issue(('w', nn % NWB), f"ds_read_b64_tr_b16 v[{r2}:{r2+1}], v{vWr[st]} offset:{kb2*9216 + a2*astride}"))
                        fill.append(lambda nn=nn, kb2=kb2, a2=a2, r2=r2: lg.issue(('w', nn % NWB), f"ds_read_b64_tr_b16 v[{r2+2}:{r2+3}], v{vWr[st]} offset:{kb2*9216 + 4608 + a2*astride}"))
                if 2 <= n < 6:
                    fill.append(lambda tt=n-2: rdx(st, 1, tt))
                if n == 18 - DIST:
                    lg.waitall()
                    lx = None
                    if st == 2:
                        lx = a.newlabel("k1_last")
                        a(f"s_cmp_eq_u32 s{sIt}, 2")
                        a(f"s_cbranch_scc1 {lx}")
                    a("s_barrier")
                    first_reads((st + 1) % 3)
                    if lx: a.label(lx)
                if n == 9:
                    lxf = a.newlabel("k1_xf"); lxf1 = a.newlabel("k1_xf1")
                    a(f"""
                    s_mul_i32 s58, s{sIt}, 3
                    s_add_u32 s58, s58, {st}
                    s_cmp_lg_u32 s58, s{sXFst}
                    s_cbranch_scc1 {lxf}
                    s_cmp_eq_u32 s{sXFkb}, 1
                    s_cbranch_scc1 {lxf1}
                    """)
                    for kk in range(2):
                        for tt in range(4):
                            r = XF + (kk*4+tt)*4
                            a(f"s_add_u32 s58, s{sXFb}, {tt*XF_T}")
                            a(f"buffer_store_dwordx4 v[{r}:{r+3}], v{vL16}, s[{sWS}:{sWS+3}], s58 offen {STA}")
                        if kk == 0:
                            a(f"s_branch {lxf}"); a.label(lxf1)
                    a.label(lxf)
                r = WF + (n % NWB)*4
                for tt in range(4):
                    d = ACC + (aa*4+tt)*4
                    xr = XF + (kb*4+tt)*4
                    if 'nomfma' not in EXP:
                        if swap: mf16(a, d, xr, r)
                        else: mf16(a, d, r, xr)
                    if fill: fill.pop(0)()
                while fill: fill.pop(0)()
                if n + 1 < 18 - DIST:
                    if n + 1 == 9: lg.wait(('x', 1, 3))
                    lg.wait(('w', (n + 1) % NWB))
                if n == 17:
                    lg.wait(('x', 0, 3)); lg.wait(('w', 0))
        a(f"""
        s_add_u32 s{sIt}, s{sIt}, 1
        s_cmp_lt_u32 s{sIt}, 3
        s_cbranch_scc1 {L}
        """)
    a(f"""
    s_cmp_ge_u32 s{sNT}, 12
    s_cbranch_scc1 L_k1_Z
    s_cmp_ge_u32 s{sNT}, 8
    s_cbranch_scc1 L_k1_V
    """)
    mainloop(False, "qk", 8)
    stamp(a, 3)
    sHS, sBase, sScale = 60, 61, 62
    a(f"""
    s_cmp_lt_u32 s{sNT}, 4
    s_mov_b32 s{sHS}, {KV_HEAD}
    s_cselect_b32 s{sHS}, {QF_HEAD}, s{sHS}
    s_mov_b32 s64, {KV_TILE}
    s_cselect_b32 s64, {QF_TILE}, s64
    s_cselect_b32 s{sBase}, {OFF_QF}, {OFF_KV}
    s_cselect_b32 s{sScale}, {hex(f2u(QSCALE))}, 1.0
    s_cselect_b32 s63, 0, 1              ; isK
    s_mov_b32 s{sScale+0}, s{sScale}
    s_and_b32 s59, s{sNT}, 3
    s_lshl_b32 s59, s59, 3
    s_mul_i32 s59, s59, s{sHS}
    s_add_u32 s{sBase}, s{sBase}, s59
    s_lshl_b32 s59, s{sMT}, 3
    s_lshl_b32 s58, s{sWave}, 1
    s_add_u32 s59, s59, s58
    s_mul_i32 s59, s59, s64
    s_add_u32 s{sBase}, s{sBase}, s59
    s_add_u32 s65, s{sBase}, s64
    v_and_b32 v12, 15, v2                ; tok
    v_lshrrev_b32 v13, 4, v2
    v_and_b32 v14, 8, v12
    v_add_u32 v14, v14, v12
    s_cmp_eq_u32 s63, 1
    s_cselect_b64 vcc, -1, 0
    s_cselect_b32 s58, 8, 16
    v_cndmask_b32 v14, v12, v14, vcc
    v_add_u32 v15, s58, v14
    s_lshl_b32 s58, s{sHS}, 1
    v_mul_lo_u32 v13, v13, s58
    v_lshl_add_u32 v16, v14, 4, v13
    v_lshl_add_u32 v17, v15, 4, v13      ; tt'=1
    v_add_u32 v18, s{sHS}, v16
    v_add_u32 v19, s{sHS}, v17
    v_lshl_add_u32 v20, v14, 2, v13
    v_lshl_add_u32 v21, v15, 2, v13
    v_add_u32 v22, s{sHS}, v20
    v_add_u32 v23, s{sHS}, v21
    v_mov_b32 v24, s{sScale}
    v_mov_b32 v25, s{sScale}
    """)
    cnt = 0
    for tt in range(4):
        base = sBase if tt < 2 else 65
        def R(aa): return ACC + (aa*4+tt)*4
        for aa in range(9):
            a(f"v_pk_mul_f32 v[{R(aa)}:{R(aa)+1}], v[{R(aa)}:{R(aa)+1}], v[24:25]")
            a(f"v_pk_mul_f32 v[{R(aa)+2}:{R(aa)+3}], v[{R(aa)+2}:{R(aa)+3}], v[24:25]")
        for (a0, vaddr, off) in ((0, 16, 0), (2, 16, 512), (5, 18, 0), (7, 18, 512)):
            dst = 208 + 4*(cnt % 8); cnt += 1
            a(f"""
            v_cvt_pk_bf16_f32 v{dst}, v{R(a0)}, v{R(a0)+1}
            v_cvt_pk_bf16_f32 v{dst+1}, v{R(a0)+2}, v{R(a0)+3}
            v_cvt_pk_bf16_f32 v{dst+2}, v{R(a0+1)}, v{R(a0+1)+1}
            v_cvt_pk_bf16_f32 v{dst+3}, v{R(a0+1)+2}, v{R(a0+1)+3}
            buffer_store_dwordx4 v[{dst}:{dst+3}], v{vaddr+(tt&1)}, s[{sWS}:{sWS+3}], s{base} offen offset:{off} {STM}
            """)
        dst = 208 + 4*(cnt % 8); cnt += 1
        a(f"""
        v_cvt_pk_bf16_f32 v{dst}, v{R(4)}, v{R(4)+1}
        v_cvt_pk_bf16_f32 v{dst+1}, v{R(4)+2}, v{R(4)+3}
        buffer_store_dword v{dst}, v{20+(tt&1)}, s[{sWS}:{sWS+3}], s{base} offen offset:1024 {STM}
        buffer_store_dword v{dst+1}, v{22+(tt&1)}, s[{sWS}:{sWS+3}], s{base} offen offset:1024 {STM}
        """)
    a("s_branch L_k1_fin")
    a.label("L_k1_Z")
    mainloop(False, "z", 32)
    stamp(a, 3)
    a(f"""
    s_sub_u32 s58, s{sNT}, 12            ; j
    s_lshr_b32 s59, s58, 1               ; gamma
    s_and_b32 s60, s58, 1                ; pi
    s_mul_i32 s59, s59, 9
    s_mul_i32 s61, s60, 5
    s_add_u32 s61, s61, s59              ; kb0
    s_add_u32 s62, s59, 4
    s_lshl_b32 s63, s{sMT}, 4
    s_lshl_b32 s58, s{sWave}, 2
    s_add_u32 s63, s63, s58
    s_mul_i32 s63, s63, {Z2D_T}
    s_add_u32 s63, s63, {OFF_Z2D}
    s_lshl_b32 s61, s61, 10
    s_add_u32 s61, s61, s63
    s_lshl_b32 s62, s62, 10
    s_add_u32 s62, s62, s63
    s_lshl_b32 s60, s60, 3
    s_add_u32 s62, s62, s60
    v_lshlrev_b32 v10, 4, v2             ; lane*16
    """)
    cnt = 0
    for tt in range(4):
        for pr in range(4):
            r0 = ACC + ((2*pr)*4+tt)*4; r1 = ACC + ((2*pr+1)*4+tt)*4
            dst = 208 + 4*(cnt % 8); cnt += 1
            a(f"v_cvt_pk_bf16_f32 v{dst}, v{r0}, v{r0+1}")
            a(f"v_cvt_pk_bf16_f32 v{dst+1}, v{r0+2}, v{r0+3}")
            a(f"v_cvt_pk_bf16_f32 v{dst+2}, v{r1}, v{r1+1}")
            a(f"v_cvt_pk_bf16_f32 v{dst+3}, v{r1+2}, v{r1+3}")
            a(f"s_add_u32 s58, s61, {pr*1024 + tt*Z2D_T}")
            a(f"buffer_store_dwordx4 v[{dst}:{dst+3}], v10, s[{sWS}:{sWS+3}], s58 offen {STM}")
        r0 = ACC + (8*4+tt)*4
        dst = 208 + 4*(cnt % 8); cnt += 1
        a(f"v_cvt_pk_bf16_f32 v{dst}, v{r0}, v{r0+1}")
        a(f"v_cvt_pk_bf16_f32 v{dst+1}, v{r0+2}, v{r0+3}")
        a(f"s_add_u32 s58, s62, {tt*Z2D_T}")
        a(f"buffer_store_dwordx2 v[{dst}:{dst+1}], v10, s[{sWS}:{sWS+3}], s58 offen {STM}")
    a("s_branch L_k1_fin")
    a.label("L_k1_V")
    mainloop(True, "v", 32)
    stamp(a, 3)
    a(f"""
    s_sub_u32 s58, s{sNT}, 8
    s_lshl_b32 s58, s58, 3
    s_mul_i32 s61, s58, {KV_HEAD}
    s_lshl_b32 s59, s{sMT}, 3
    s_lshl_b32 s58, s{sWave}, 1
    s_add_u32 s59, s59, s58
    s_mul_i32 s59, s59, {KV_TILE}
    s_add_u32 s61, s61, s59
    s_add_u32 s61, s61, {OFF_KV + 1152}  ; base
    s_add_u32 s63, s61, {KV_TILE}
    v_and_b32 v10, 15, v2                ; n16
    v_lshrrev_b32 v11, 4, v2             ; g
    v_mul_u32_u24 v11, 304, v11          ; g*304
    s_mov_b32 s62, {KV_HEAD}
    """)
    cnt = 0
    for aa in range(9):
        a(f"""
        v_add_u32 v12, {16*aa}, v10      ; n
        v_mul_u32_u24 v13, 57, v12
        v_lshrrev_b32 v13, 10, v13       ; hl
        v_mul_u32_u24 v14, 18, v13
        v_sub_u32 v14, v12, v14          ; d
        v_mul_lo_u32 v13, v13, s62
        v_lshl_add_u32 v13, v14, 4, v13
        v_add_u32 v13, v13, v11
        """)
        for th in range(2):
            r0 = ACC + (aa*4+2*th)*4; r1 = r0 + 4
            dst = 208 + 4*(cnt % 8); cnt += 1
            a(f"""
            v_cvt_pk_bf16_f32 v{dst}, v{r0}, v{r0+1}
            v_cvt_pk_bf16_f32 v{dst+1}, v{r0+2}, v{r0+3}
            v_cvt_pk_bf16_f32 v{dst+2}, v{r1}, v{r1+1}
            v_cvt_pk_bf16_f32 v{dst+3}, v{r1+2}, v{r1+3}
            buffer_store_dwordx4 v[{dst}:{dst+3}], v13, s[{sWS}:{sWS+3}], s{61 if th == 0 else 63} offen {STM}
            """)
    a(f"""
    v_lshrrev_b32 v12, 2, v2
    v_and_b32 v12, 7, v12
    v_mul_lo_u32 v12, v12, s62
    v_and_b32 v13, 3, v2
    v_mul_u32_u24 v13, 304, v13
    v_add_u32 v12, v12, v13
    v_add_u32 v12, {18*16}, v12
    v_lshrrev_b32 v13, 5, v2
    v_mul_u32_u24 v13, {KV_TILE}, v13
    v_add_u32 v12, v12, v13
    v_mov_b32 v20, 0x3f803f80
    v_mov_b32 v21, 0x3f803f80
    v_mov_b32 v22, 0x3f803f80
    v_mov_b32 v23, 0x3f803f80
    buffer_store_dwordx4 v[20:23], v12, s[{sWS}:{sWS+3}], s61 offen {STM}
    s_branch L_k1_fin
    """)
    a.label("L_k1_loader")
    srd(a, sX, 4, 5, S_TOK * D * 2)
    vX = 3; vW = [4, 5, 6, 7, 8]
    a(f"""
    s_sub_u32 s{sLW}, s{sWave}, 4
    s_cmp_ge_u32 s41, 28
    s_cbranch_scc1 L_k1_end
    """)
    a(f"""
    s_cmp_lt_u32 s{sNT}, 12
    s_cselect_b32 s6, s6, s10
    s_cselect_b32 s7, s7, s11
    s_mov_b32 s47, {D*4608*2}
    s_cselect_b32 s47, {D*1728*2}, s47
    s_mov_b32 s{sRS}, 9216
    s_cselect_b32 s{sRS}, 3456, s{sRS}
    s_mul_i32 s{sCOL}, s{sNT}, 288
    s_cselect_b32 s48, 0, {4608 - 12*288}
    s_add_u32 s{sCOL}, s{sCOL}, s48
    s_mov_b32 s{sW}, s6
    s_and_b32 s{sW+1}, s7, 0xffff
    s_mov_b32 s{sW+2}, s47
    s_mov_b32 s{sW+3}, 0x20000
    v_lshrrev_b32 v10, 3, v2             ; r
    v_and_b32 v11, 7, v2                 ; c
    v_xor_b32 v11, v11, v10
    v_lshlrev_b32 v11, 4, v11
    s_lshl_b32 s48, s{sMT}, 8
    s_lshl_b32 s49, s{sLW}, 6
    s_add_u32 s48, s48, s49
    v_add_u32 v12, s48, v10
    v_mul_u32_u24 v12, 1152, v12
    v_add_u32 v{vX}, v12, v11
    """)
    sXo, sWo, sWstep, sSlotW, sIt2 = 50, 51, 52, 54, 53
    a(f"""
    s_mov_b32 s{sXo}, 0
    s_mov_b32 s{sWo}, 0
    s_lshl_b32 s{sWstep}, s{sRS}, 6
    s_mov_b32 s{sSlotW}, 0
    s_lshl_b32 s56, s{sLW}, 13
    s_lshl_b32 s57, s{sLW}, 10
    s_add_u32 s57, s57, {K1_WOFF}
    """)
    def issue_x():
        a(f"s_add_u32 s58, s{sSlotW}, s56")
        for j in range(8):
            a(f"s_add_u32 m0, s58, {j*1024}")
            a(f"s_add_u32 s59, s{sXo}, {j*9216}")
            a(f"buffer_load_dwordx4 v{vX}, s[{sX}:{sX+3}], s59 offen lds")
    def issue_w():
        a(f"s_add_u32 s58, s{sSlotW}, s57")
        for qi in range(4):
            a(f"s_add_u32 m0, s58, {qi*4096}")
            a(f"s_nop 0")
            a(f"buffer_load_dwordx4 v{vW[qi]}, s[{sW}:{sW+3}], s{sWo} offen lds")
        l = a.newlabel("k1_skipw")
        a(f"s_cmp_ge_u32 s{sLW}, 2")
        a(f"s_cbranch_scc1 {l}")
        a(f"s_add_u32 m0, s58, {4*4096}")
        a(f"s_nop 0")
        a(f"buffer_load_dwordx4 v{vW[4]}, s[{sW}:{sW+3}], s{sWo} offen lds")
        a.label(l)
    def advance():
        a(f"""
        s_add_u32 s{sXo}, s{sXo}, 128
        s_add_u32 s{sWo}, s{sWo}, s{sWstep}
        s_add_u32 s{sSlotW}, s{sSlotW}, {K1_STAGE}
        s_cmp_ge_u32 s{sSlotW}, {3*K1_STAGE}
        s_cselect_b32 s{sSlotW}, 0, s{sSlotW}
        """)
    for qi in range(5):
        a(f"""
        s_add_u32 s48, s{sLW}, {4*qi}
        s_lshl_b32 s48, s48, 6
        v_add_u32 v10, s48, v2           ; ci
        v_mul_u32_u24 v11, 3641, v10
        v_lshrrev_b32 v11, 16, v11
        v_mul_u32_u24 v12, 18, v11
        v_sub_u32 v12, v10, v12          ; cc
        v_lshl_add_u32 v12, v12, 4, s{sCOL}
        v_and_b32 v13, 32, v11           ; 32*(rho>>5)
        v_bfe_u32 v14, v11, 2, 2
        v_lshl_add_u32 v13, v14, 3, v13
        v_bfe_u32 v14, v11, 4, 1
        v_lshl_add_u32 v13, v14, 2, v13
        v_and_b32 v14, 3, v11
        v_add_u32 v13, v13, v14          ; krow
        v_mul_lo_u32 v13, v13, s{sRS}
        v_add_u32 v{vW[qi]}, v13, v12
        """)
    a(f"s_mov_b32 s{sIt2}, 0")
    a.label("L_k1_ldloop")
    lnb = a.newlabel("k1_nobar"); lw0 = a.newlabel("k1_w0"); lw23 = a.newlabel("k1_w23"); lgo = a.newlabel("k1_go")
    a(f"""
    s_cmp_lt_u32 s{sIt2}, 2
    s_cbranch_scc1 {lnb}
    s_cmp_eq_u32 s{sIt2}, 10
    s_cbranch_scc1 {lw0}
    s_waitcnt vmcnt(12)
    s_branch {lgo}
    {lw0}:
    s_waitcnt vmcnt(0)
    {lgo}:
    s_barrier
    {lnb}:
    """)
    lni = a.newlabel("k1_noiss")
    a(f"s_cmp_ge_u32 s{sIt2}, {2 if 'nodma' in EXP else 9}")
    a(f"s_cbranch_scc1 {lni}")
    issue_x(); issue_w(); advance()
    a.label(lni)
    if DIAG:
        lq = a.newlabel("st1")
        a(f"s_cmp_lg_u32 s{sIt2}, 1\ns_cbranch_scc1 {lq}")
        stamp(a, 1)
        a.label(lq)
    a(f"s_add_u32 s{sIt2}, s{sIt2}, 1\ns_cmp_lt_u32 s{sIt2}, 11\ns_cbranch_scc1 L_k1_ldloop")
    a("s_branch L_k1_fin")
    a.label("L_k1_spare")
    srd(a, sX, 4, 5, S_TOK * D * 2)
    srd(a, sG, 14, 15, D * 2)
    srd(a, sWSP, 12, 13, S_TOK * S_TOK * 2)
    a(f"""
    s_sub_u32 s41, s41, 28
    s_lshl_b32 s42, s40, 2
    s_add_u32 s42, s42, s41
    s_lshl_b32 s42, s42, 2
    s_add_u32 s42, s42, s{sWave}          ; 0..127
    s_lshl_b32 s43, s42, 4
    v_lshrrev_b32 v10, 3, v2              ; r
    v_and_b32 v11, 7, v2                  ; c
    v_lshlrev_b32 v22, 4, v11
    """)
    for l in range(9):
        a(f"buffer_load_dwordx4 v[{120+4*l}:{120+4*l+3}], v22, s[{sG}:{sG+3}], 0 offen offset:{128*l}")
    for h in range(2):
        a(f"""
        v_add_u32 v12, s43, v10
        v_add_u32 v12, {8*h}, v12          ; row
        v_mul_u32_u24 v13, 1152, v12
        v_lshl_add_u32 v21, v11, 4, v13
        v_mov_b32 v{14+h}, v12
        """)
        for l in range(9):
            a(f"buffer_load_dwordx4 v[{24+36*h+4*l}:{24+36*h+4*l+3}], v21, s[{sX}:{sX+3}], 0 offen offset:{128*l}")
    a(f"""
    v_add_u32 v12, s43, v10
    v_lshlrev_b32 v12, 12, v12
    v_lshl_add_u32 v23, v11, 4, v12
    s_waitcnt vmcnt(0)
    """)
    for h in range(2):
        a(f"v_mov_b32 v16, 0")
        for l in range(9):
            for d in range(4):
                a(f"v_dot2_f32_bf16 v16, v{24+36*h+4*l+d}, v{120+4*l+d}, v16")
        a(f"""
        v_add_f32_dpp v16, v16, v16 quad_perm:[1,0,3,2] row_mask:0xf bank_mask:0xf
        v_add_f32_dpp v16, v16, v16 quad_perm:[2,3,0,1] row_mask:0xf bank_mask:0xf
        v_add_f32_dpp v16, v16, v16 row_half_mirror row_mask:0xf bank_mask:0xf
        v_mul_f32 v16, {hex(f2u(-math.log2(math.e)))}, v16
        v_exp_f32 v16, v16
        v_add_f32 v16, 1.0, v16
        v_rcp_f32 v16, v16
        v_lshlrev_b32 v17, 2, v{14+h}
        v_add_u32 v17, {OFF_GATE}, v17
        v_mov_b32 v18, {OOB}
        v_cmp_eq_u32 vcc, 0, v11
        v_cndmask_b32 v17, v18, v17, vcc
        buffer_store_dword v16, v17, s[{sWS}:{sWS+3}], 0 offen
        """)
    if 'nopf' not in EXP:
        a("s_mov_b32 s44, 0")
        a.label("L_k1_pf")
        for l in range(16):
            a(f"buffer_load_dwordx4 v[{24+4*l}:{24+4*l+3}], v23, s[{sWSP}:{sWSP+3}], s44 offen offset:{128*l}")
        a("""
        s_add_u32 s44, s44, 2048
        s_cmp_eq_u32 s44, 4096
        s_cselect_b32 s45, 28672, 0
        s_add_u32 s44, s44, s45
        s_waitcnt vmcnt(16)
        s_cmp_lt_u32 s44, 36864
        s_cbranch_scc1 L_k1_pf
        s_waitcnt vmcnt(0)
        """)
    a("s_branch L_k1_fin")
    a.label("L_k1_fin")
    if DIAG:
        a("s_waitcnt vmcnt(0)")
        stamp(a, 4)
        stamp_flush(a, sWS, sWave, 0, 5)
        itstamp_flush(a, sWS, sWave, 2, 0)
    a.label("L_k1_end")
    a("s_endpgm")
    kernel_end(a, name, vgpr=256, sgpr=96)
```

```python
from common import *
def triv_kernel(a, name):
    kernel_begin(a, name)
    a(f"""
    s_memrealtime s[12:13]
    s_load_dwordx2 s[8:9], s[0:1], {KA['ws']}
    s_waitcnt lgkmcnt(0)
    """)
    srd(a, 24, 8, 9, WS_USED)
    a(f"""
    s_lshl_b32 s3, s2, 2
    s_add_u32 s3, s3, {OFF_STAMP + 0x300000}
    v_mov_b32 v1, s12
    v_mov_b32 v2, 0
    v_cmp_eq_u32 vcc, 0, v0
    s_and_saveexec_b64 s[16:17], vcc
    s_cbranch_execz L_triv_end
    buffer_store_dword v1, v2, s[24:27], s3 offen
    L_triv_end:
    s_endpgm
    """)
    kernel_end(a, name, vgpr=64, sgpr=32)
```

```python
import sys
sys.path.insert(0, "g")
from common import *
import importlib, os

def build(kernels, path):
    hdr = "; gated_mix kernel (generated by my own python generator)\n"
    for (name, fn, grid, block, lds) in kernels:
        hdr += f"; @launch kernel={name} grid=({grid},1,1) block=({block},1,1) lds={lds}\n"
    body = '.amdgcn_target "amdgcn-amd-amdhsa--gfx950"\n'
    done = set()
    for (name, fn, grid, block, lds) in kernels:
        if name in done: continue
        done.add(name)
        a = Asm()
        fn(a, name)
        n = a.fix_hazards()
        body += a.text()
        print(f"{name}: {len(a.items)} items, {n} nop states inserted", file=sys.stderr)
    open(path, "w").write(hdr + body)

if __name__ == "__main__":
    import k1, triv, attn, brole, final
    ks = [("k1_kernel", k1.k1_kernel, 256, 512, k1.K1_LDS)]
    what = os.environ.get('KS', 'k1').split(',')
    if 'attn' in what: ks.append(("attn_kernel", attn.attn_kernel, 256, 256, attn.AT_LDS))
    if 'ln' in what: ks.append(("ln_kernel", brole.ln_kernel, 256, 256, brole.LN_LDS))
    if 'sp' in what: ks.append(("sp_kernel", brole.spatial_kernel, 256, 256, brole.B_LDS))
    if 'fi' in what: ks.append(("fi_kernel", final.final_kernel, 256, 256, final.F_LDS))
    if 'triv' in os.environ.get('EXP',''): ks.append(("triv_kernel", triv.triv_kernel, 256, 256, 0))
    build(ks, sys.argv[1])
```
